```python
import torch

def _softmax(x, axis=-1):
    return torch.softmax(x, dim=axis)

def _gelu(x):
    return torch.nn.functional.gelu(x, approximate='tanh')

def _silu(x):
    return torch.nn.functional.silu(x)

def _sigmoid(x):
    return torch.sigmoid(x)

def _layernorm(x, axis=-1, eps=1e-05):
    m = x.mean(dim=axis, keepdim=True)
    v = x.var(dim=axis, keepdim=True, unbiased=False)
    return (x - m) / torch.sqrt(v + eps)

def _scatter_add(tgt, idx, src, axis=0):
    return tgt.clone().index_add_(axis, idx, src)

def _segment_sum(src, seg, n):
    out = torch.zeros((n,) + src.shape[1:], dtype=src.dtype)
    return out.index_add_(0, seg, src)

def _pad(x, pw):
    flat = tuple((v for pair in reversed(pw) for v in pair))
    return torch.nn.functional.pad(x, flat)
kernel_name = 'standalone__conformer_family_branchformer__speech'

def setup_inputs():

    _w = lambda a: (lambda t: t.to(torch.bfloat16) if t.is_floating_point() else t)(torch.as_tensor(a))
    B, T, D, K = (2, 4000, 256, 15)
    s = float(D) ** (-0.5)
    return {'x': _w((lambda *s: torch.randn(*s, dtype=torch.bfloat16) * 0.05)(B, T, D)), 'w_q': _w((lambda *s: torch.randn(*s, dtype=torch.bfloat16) * 1.6)(D, D) * s), 'w_k': _w((lambda *s: torch.randn(*s, dtype=torch.bfloat16) * 1.6)(D, D) * s), 'w_v': _w((lambda *s: torch.randn(*s, dtype=torch.bfloat16) * 0.4)(D, D) * s), 'w_ao': _w((lambda *s: torch.randn(*s, dtype=torch.bfloat16) * 0.4)(D, D) * s), 'w_up': _w((lambda *s: torch.randn(*s, dtype=torch.bfloat16) * 0.8)(D, 2 * D) * s), 'dw': _w((lambda *s: torch.randn(*s, dtype=torch.bfloat16) * 0.8)(K, D) * (1.0 / K)), 'w_dn': _w((lambda *s: torch.randn(*s, dtype=torch.bfloat16) * 0.4)(D, D) * s), 'w_merge': _w((lambda *s: torch.randn(*s, dtype=torch.bfloat16) * 0.4)(2 * D, D) * s)}

def reference(x, w_q, w_k, w_v, w_ao, w_up, dw, w_dn, w_merge):
    B, T, D = x.shape
    K = dw.shape[0]
    xa = _layernorm(x, axis=-1)
    q = torch.einsum('btd,de->bte', xa, w_q)
    k = torch.einsum('btd,de->bte', xa, w_k)
    v = torch.einsum('btd,de->bte', xa, w_v)
    logits = torch.einsum('btd,bsd->bts', q, k) * float(D) ** (-0.5)
    attn = _softmax(logits, axis=-1)
    ya = torch.einsum('bts,bsd->btd', attn, v)
    ya = torch.einsum('btd,de->bte', ya, w_ao)
    xc = _layernorm(x, axis=-1)
    h = _gelu(torch.einsum('btd,de->bte', xc, w_up))
    u = h[..., :D].clone()
    g = _layernorm(h[..., D:], axis=-1)
    pad = K // 2
    gp = _pad(g, ((0, 0), (pad, pad), (0, 0)))
    conv = torch.zeros_like(g)
    for i in range(K):
        conv = conv + gp[:, i:i + T, :] * dw[i][None, None, :]
    yc = torch.einsum('btd,de->bte', u * conv, w_dn)
    merged = torch.concatenate([ya, yc], axis=-1)
    out = torch.einsum('btf,fd->btd', merged, w_merge)
    return x + out
```

```python
import re

TRANS = ("v_exp_f32", "v_log_f32", "v_rcp_f32", "v_rsq_f32", "v_sqrt_f32", "v_sin_f32", "v_cos_f32", "v_rcp_iflag_f32")

def regs_of(tok):
    tok = tok.strip()
    t = tok
    if t.startswith("-"): t = t[1:]
    if t.startswith("abs(") : t = t[4:-1]
    if t.startswith("|"): t = t.strip("|")
    m = re.fullmatch(r"([vas])(\d+)", t)
    if m: return {(m.group(1), int(m.group(2)))}
    m = re.fullmatch(r"([vas])\[(\d+):(\d+)\]", t)
    if m: return {(m.group(1), i) for i in range(int(m.group(2)), int(m.group(3)) + 1)}
    if t in ("vcc", "vcc_lo", "vcc_hi"): return {("x", "vcc")}
    if t in ("exec", "exec_lo", "exec_hi"): return {("x", "exec")}
    if t == "m0": return {("x", "m0")}
    if t == "scc": return {("x", "scc")}
    return set()

def split_ops(s):
    out, depth, cur = [], 0, ""
    for ch in s:
        if ch in "[(": depth += 1
        if ch in "])": depth -= 1
        if ch == "," and depth == 0:
            out.append(cur.strip()); cur = ""
        else:
            cur += ch
    if cur.strip(): out.append(cur.strip())
    return out

class Ins:
    __slots__ = ("text", "op", "ops", "mods", "kind", "w", "r", "srcc", "srcab", "passes", "ws", "lds_dma", "wide_store", "dpp")
    def __init__(self, text):
        self.text = text
        t = text.split(";")[0].strip()
        parts = t.split(None, 1)
        self.op = parts[0]
        rest = parts[1] if len(parts) > 1 else ""
        ops = split_ops(rest)
        mods = []
        if ops:
            last = ops[-1].split()
            if len(last) > 1 and not self.op.startswith("s_waitcnt"):
                ops[-1] = last[0]; mods = last[1:]
        self.ops, self.mods = ops, mods
        self.w, self.r = set(), set()
        self.srcc, self.srcab = set(), set()
        self.passes = 0; self.ws = 1; self.lds_dma = False; self.wide_store = set(); self.dpp = False
        op = self.op
        op = re.sub(r"_(e32|e64|dpp|sdwa)$", "", op)
        R = lambda i: regs_of(ops[i]) if i < len(ops) else set()
        if op.startswith("v_mfma"):
            self.kind = "mfma"
            self.w = R(0); self.srcab = R(1) | R(2); self.srcc = R(3); self.r = self.srcab | self.srcc
            self.passes = 8 if "32x32" in op else 4
        elif op.startswith("v_"):
            self.kind = "trans" if op in TRANS else "valu"
            self.dpp = any(m.startswith(("quad_perm", "row_", "wave_", "row_bcast")) for m in mods) or self.op.endswith("_dpp")
            if op.startswith("v_cmp"):
                self.w = R(0); self.r = R(1) | R(2)
                if op.startswith("v_cmpx"): self.w |= {("x", "exec")}
            elif op in ("v_readfirstlane_b32", "v_readlane_b32"):
                self.w = R(0); self.r = R(1) | R(2)
            elif op.startswith("v_permlane") and "swap" in op:
                self.w = R(0) | R(1); self.r = R(0) | R(1)
            elif op in ("v_add_co_u32", "v_sub_co_u32", "v_addc_co_u32", "v_subb_co_u32", "v_mad_u64_u32"):
                self.w = R(0) | R(1); self.r = set().union(*[R(i) for i in range(2, len(ops))])
            elif op == "v_nop":
                pass
            else:
                self.w = R(0); self.r = set().union(*[R(i) for i in range(1, len(ops))]) if len(ops) > 1 else set()
                if op.startswith(("v_fmac", "v_pk_fmac", "v_dot2c", "v_writelane")) or self.dpp: self.r |= R(0)
                if op == "v_cndmask_b32" and len(ops) == 3: self.r |= {("x", "vcc")}
        elif op.startswith("ds_"):
            self.kind = "ds"
            if op.startswith(("ds_read", "ds_bpermute", "ds_permute", "ds_swizzle")):
                self.w = R(0); self.r = set().union(*[R(i) for i in range(1, len(ops))])
            else:
                self.r = set().union(*[R(i) for i in range(0, len(ops))])
        elif op.startswith(("buffer_", "global_")):
            self.kind = "vmem"
            if op in ("buffer_inv", "buffer_wbl2"):
                pass
            elif "lds" in mods or "_lds_" in op:
                self.lds_dma = True
                self.r = set().union(*[R(i) for i in range(0, len(ops))]) | {("x", "m0")}
            elif "_load_" in op:
                self.w = R(0); self.r = set().union(*[R(i) for i in range(1, len(ops))])
            elif "_store_" in op:
                self.r = set().union(*[R(i) for i in range(0, len(ops))])
                if op.endswith(("x3", "x4")):
                    self.wide_store = R(0) if op.startswith("buffer_") else R(1)
            elif "_atomic_" in op:
                self.r = set().union(*[R(i) for i in range(0, len(ops))])
                if "sc0" in mods:
                    self.w = R(0)
                    if op.startswith("global_"): self.r = set().union(*[R(i) for i in range(1, len(ops))])
            else:
                raise ValueError("vmem? " + text)
        elif op.startswith(("s_load", "s_buffer_load", "s_memtime", "s_memrealtime", "s_atomic")):
            self.kind = "smem"
            self.w = R(0); self.r = set().union(*[R(i) for i in range(1, len(ops))]) if len(ops) > 1 else set()
        elif op == "s_waitcnt":
            self.kind = "wait"
        elif op == "s_nop":
            self.kind = "nop"; self.ws = int(ops[0], 0) + 1
        elif op in ("s_barrier", "s_endpgm", "s_setprio", "s_sleep"):
            self.kind = "misc"
        elif op.startswith(("s_branch", "s_cbranch")):
            self.kind = "branch"
            if "vcc" in op: self.r = {("x", "vcc")}
            if "exec" in op: self.r = {("x", "exec")}
        elif op.startswith("s_"):
            self.kind = "salu"
            if op.startswith(("s_cmp", "s_bitcmp")):
                self.r = R(0) | R(1)
            elif op.startswith("s_getreg") or op.startswith("s_getpc"):
                self.w = R(0)
            elif op.startswith("s_setpc"):
                self.r = R(0)
            else:
                self.w = R(0); self.r = set().union(*[R(i) for i in range(1, len(ops))]) if len(ops) > 1 else set()
                if "saveexec" in op: self.w |= {("x", "exec")}; self.r |= {("x", "exec")}
                if op in ("s_addk_i32", "s_mulk_i32"): self.r |= R(0)
        else:
            raise ValueError("unknown instr: " + text)

def parse_wait(ins):
    vm = lg = None
    t = ins.text.split(";")[0]
    m = re.search(r"vmcnt\((\d+)\)", t); vm = int(m.group(1)) if m else None
    m = re.search(r"lgkmcnt\((\d+)\)", t); lg = int(m.group(1)) if m else None
    return vm, lg

def check_trace(lines, name="trace", verbose=True):
    ins = []
    for l in lines:
        t = l.split(";")[0].strip()
        if not t or t.endswith(":") or t.startswith("."): continue
        ins.append(Ins(l.strip()))
    probs = []
    pos = [0]
    for i in ins: pos.append(pos[-1] + i.ws)
    def dist(a, b):
        return pos[b] - pos[a + 1]
    MAXD = 24
    T_ab = {2: 5, 4: 8, 8: 12, 16: 20}
    T_cov = {2: 4, 4: 6, 8: 10, 16: 18}
    T_war = {2: 1, 4: 3, 8: 7, 16: 15}
    isv = lambda s: {x for x in s if x[0] in "va"}
    iss = lambda s: {x for x in s if x[0] == "s" or x == ("x", "vcc")}
    for b, B in enumerate(ins):
        if B.kind in ("wait", "nop", "misc"): continue
        a = b - 1
        while a >= 0 and dist(a, b) < MAXD:
            A = ins[a]; d = dist(a, b); need = 0; why = ""
            def req(n, w):
                nonlocal need, why
                if n > need: need, why = n, w
            if A.kind in ("valu", "trans"):
                if B.kind == "mfma" and isv(A.w) & B.r: req(2, "valu->mfma")
                if A.kind == "trans" and B.kind == "valu" and A.w & B.r: req(1, "trans->valu")
                if B.kind in ("valu", "trans") and iss(A.w) & B.r:
                    req(4 if B.op.startswith(("v_readlane", "v_writelane")) and iss(A.w) & regs_of(B.ops[2]) else 2, "valu sgpr->valu")
                if B.kind == "vmem" and iss(A.w) & B.r: req(5, "valu sgpr->vmem")
                if B.op.startswith(("v_readfirstlane", "v_readlane")) and isv(A.w) & B.r: req(1, "valu->readlane")
                if B.op.startswith("v_permlane") and isv(A.w) & B.r: req(2, "valu->permlane")
                if B.dpp and isv(A.w) & B.r: req(2, "valu->dpp")
                if ("x", "exec") in A.w:
                    if B.kind == "mfma" or B.op.startswith(("v_readlane", "v_readfirstlane", "v_writelane", "v_permlane")): req(4, "cmpx")
                    if B.dpp: req(5, "cmpx->dpp")
                if any(m.startswith(("op_sel", "dst_sel")) for m in A.mods) and not A.op.startswith("v_pk") and B.kind in ("valu", "trans") and A.w & (B.r | B.w): req(1, "opsel")
            if A.kind == "mfma":
                p = A.passes
                if B.kind == "mfma":
                    if A.w & B.srcab: req(T_ab[p], "mfma D->mfma AB")
                    if A.w & B.srcc:
                        if not (A.w == B.srcc and A.passes == B.passes): req(T_cov[p], "mfma D->mfma C overlap")
                    elif A.w & B.w: req(T_cov[p], "mfma D->mfma D WAW (conservative)") if A.w != B.w else None
                elif B.kind in ("valu", "trans"):
                    if A.w & (B.r | B.w): req(T_ab[p], "mfma D->valu")
                    if A.srcc & B.w: req(T_war[p], "mfma C WAR valu")
                elif B.kind in ("ds", "vmem"):
                    if A.w & (B.r | B.w): req(T_ab[p], "mfma D->mem")
                    if A.srcc & B.w: req(T_war[p], "mfma C WAR load")
            if A.kind == "salu" and ("x", "m0") in A.w and B.lds_dma: req(1, "m0->dma")
            if A.wide_store and (A.wide_store & B.w): req(2 if B.kind in ("valu", "trans") else 1, "store WAR")
            if need > d:
                probs.append(f"{name}: HAZARD {why}: need {need} have {d}: [{a}] {A.text}  ->  [{b}] {B.text}")
            a -= 1
    vmq, lgq = [], []
    for i, I in enumerate(ins):
        if I.kind == "wait":
            vm, lg = parse_wait(I)
            if vm is not None:
                while len(vmq) > vm: vmq.pop(0)
            if lg is not None:
                if any(k == "smem" for _, _, k in lgq):
                    if lg == 0: lgq.clear()
                else:
                    while len(lgq) > lg: lgq.pop(0)
            continue
        touched = I.r | I.w
        for q in (vmq, lgq):
            for (j, w, k) in q:
                if w & touched:
                    if (w & I.r) or not ((I.kind == "ds" and k == "ds") or (I.kind == "vmem" and k == "vmem")):
                        probs.append(f"{name}: UNWAITED [{j}] {ins[j].text}  used by [{i}] {I.text}")
        if I.kind == "vmem":
            vmq.append((i, I.w, "vmem"))
            if len(vmq) > 63: probs.append(f"{name}: vmcnt overflow at [{i}] {I.text}")
        elif I.kind == "ds":
            lgq.append((i, I.w, "ds"))
        elif I.kind == "smem":
            lgq.append((i, I.w, "smem"))
    if verbose:
        for p in probs[:40]: print(p)
        if len(probs) > 40: print("...", len(probs) - 40, "more")
    return probs

class Asm:
    def __init__(self):
        self.lines = []
    def __call__(self, s=""):
        for l in s.split("\n"):
            l = l.strip()
            if l: self.lines.append(l)
        return self
    def extend(self, ls):
        for l in ls: self(l)
    def text(self):
        out = []
        for l in self.lines:
            if l.endswith(":") or l.startswith("."): out.append(l)
            else: out.append("    " + l)
        return "\n".join(out) + "\n"

def vr(b, n=1, c="v"):
    return f"{c}{b}" if n == 1 else f"{c}[{b}:{b+n-1}]"
def ar(b, n=1): return vr(b, n, "a")
def sr(b, n=1): return vr(b, n, "s")

def auto_lgkm(lines_cyc, group=1):
    out, q = [], []
    for l in lines_cyc:
        t = l.split(";")[0].strip()
        if not t or t.endswith(":") or t.startswith("."):
            out.append(l); continue
        I = Ins(l)
        if I.kind == "wait":
            vm, lg = parse_wait(I)
            if lg is not None:
                while len(q) > lg: q.pop(0)
            out.append(l); continue
        touched = I.r | (I.w if I.kind != "ds" else set())
        need = -1
        for j, w in enumerate(q):
            if w & touched: need = j
        if need >= 0:
            n = len(q) - need - 1
            n = min(n, 15)
            out.append(f"s_waitcnt lgkmcnt({n})")
            while len(q) > n: q.pop(0)
        if I.kind == "ds": q.append(I.w)
        out.append(l)
    return out


class WState:
    def __init__(self):
        self.vm = []
        self.lg = []
    def copy(self):
        s = WState(); s.vm = list(self.vm); s.lg = list(self.lg); return s

def resolve(lines, st):
    out = []
    def emit_wait(vm, lg):
        if vm is None and lg is None: return
        if out and out[-1].startswith("s_waitcnt"):
            pv, pl = parse_wait(Ins(out[-1]))
            vm = pv if vm is None else (vm if pv is None else min(vm, pv))
            lg = pl if lg is None else (lg if pl is None else min(lg, pl))
            out.pop()
        t = "s_waitcnt"
        if vm is not None: t += f" vmcnt({vm})"
        if lg is not None: t += f" lgkmcnt({lg})"
        out.append(t)
    def need(regs, skip_ds=False, skip_vm=False):
        vm = lg = None
        if not skip_vm:
            k = -1
            for j, (w, _) in enumerate(st.vm):
                if w & regs: k = j
            if k >= 0:
                vm = min(len(st.vm) - k - 1, 63); del st.vm[:len(st.vm) - vm]
        if not skip_ds:
            k = -1
            for j, (w, _) in enumerate(st.lg):
                if w & regs: k = j
            if k >= 0:
                if any(kind == "smem" for _, kind in st.lg): lg = 0
                else: lg = min(len(st.lg) - k - 1, 15)
                del st.lg[:len(st.lg) - lg]
        emit_wait(vm, lg)
    for l in lines:
        t = l.split(";")[0].strip()
        if not t or t.endswith(":") or t.startswith("."):
            out.append(l); continue
        if t.startswith("@need"):
            regs = set()
            for tok in t.split()[1:]: regs |= regs_of(tok)
            need(regs); continue
        if t.startswith("@vm"):
            tag = t.split()[1]; k = -1
            for j, (_, tg) in enumerate(st.vm):
                if tg == tag: k = j
            if k >= 0:
                vm = min(len(st.vm) - k - 1, 63); del st.vm[:len(st.vm) - vm]; emit_wait(vm, None)
            continue
        if t.startswith("@lg0"):
            if st.lg: st.lg.clear(); emit_wait(None, 0)
            continue
        I = Ins(l)
        if I.kind == "wait":
            vm, lg = parse_wait(I)
            if vm is not None and len(st.vm) > vm: del st.vm[:len(st.vm) - vm]
            if lg is not None:
                if any(kind == "smem" for _, kind in st.lg):
                    if lg == 0: st.lg.clear()
                elif len(st.lg) > lg: del st.lg[:len(st.lg) - lg]
            emit_wait(vm, lg); continue
        need(I.r)
        need(I.w, skip_ds=(I.kind == "ds"), skip_vm=(I.kind == "vmem"))
        if I.kind == "vmem":
            if len(st.vm) >= 62:
                del st.vm[:len(st.vm) - 48]; emit_wait(48, None)
            m = re.search(r";\s*#(\S+)", l)
            st.vm.append((I.w, m.group(1) if m else None))
        elif I.kind == "ds": st.lg.append((I.w, "ds"))
        elif I.kind == "smem": st.lg.append((I.w, "smem"))
        out.append(l)
    return out

def vcost(x):
    op = x.split()[0]
    if op.startswith("@") or op.endswith(":"): return 0
    if op.startswith("s_cbranch") or op == "s_nop": return 1
    if op.startswith("s_"): return 0
    if op.startswith(("buffer_", "global_", "ds_write")): return 2
    if op in TRANS or op.startswith("v_permlane"): return 2
    return 1

def grank(x):
    op = x.split()[0]
    if op.startswith("@") or op == "s_waitcnt": return 0
    if op.startswith("s_cbranch") or op.endswith(":") or op == "s_barrier": return 4
    if op == "s_nop": return 3
    if op.startswith("s_"): return 1
    if op.startswith(("ds_", "buffer_", "global_")): return 2
    return 3

def spread(gaps, stream, glist, force=False):
    cap = [2 - sum(vcost(x) for x in gaps[g]) for g in glist]
    hasv = [any(grank(x) == 3 for x in gaps[g]) for g in glist]
    need = sum(vcost(x) for x in stream)
    tot = sum(max(c, 0) for c in cap)
    best = None
    for pc in range(min(100, int(100 * need / max(tot, 1))), 101):
        pace = pc / 100
        k = 0; done = 0; cum = 0.0; out = [[] for _ in glist]
        for n, g in enumerate(glist):
            cum += max(cap[n], 0) * pace; c = cap[n]; hv = hasv[n]
            while k < len(stream) and vcost(stream[k]) <= c and (done < cum or pc == 100):
                r = grank(stream[k])
                if r == 2 and hv: break
                if r == 3: hv = True
                out[n].append(stream[k]); c -= vcost(stream[k]); done += vcost(stream[k]); k += 1
        best = (out, k)
        if k == len(stream): break
    out, k = best
    if k < len(stream) and not force: raise Exception(f"no fit: {len(stream)-k} left")
    for n, g in enumerate(glist): gaps[g] += out[n]
    return stream[k:]

def weave(mf, gaps):
    out = []
    for i in range(len(gaps)):
        if mf[i]: out.append(mf[i])
        out += sorted(gaps[i], key=grank)
    return out
```

```python
import sys, struct
from asmlib import *

KN = "standalone__conformer_family_branchformer__speech_kernel"
MF = "v_mfma_f32_16x16x32_bf16"
FLAG_XA = 0x1000; FLAG_FOLD = 0x22000; FLAG_XCH = 0x24000
XA = 1 << 20; WG_F = 6 << 20; WU_F = WG_F + 0x20000; WD_F = WG_F + 0x40000; WV_F = WG_F + 0x60000; DW_F = WG_F + 0x80000
XCH = 8 << 20; WS_USED = 16 << 20; TS_OFF = 100 << 20
REG = 40960
def f2u(x): return struct.unpack("<I", struct.pack("<f", x))[0]
LOG2E = 1.4426950408889634

pX, pWq, pWk, pWv, pWao, pWup, pDw, pWdn, pWm, pOut, pDbg, pWs = range(4, 28, 2)
sX, sWq, sWk, sWS, sXA, sOut = 28, 32, 36, 40, 44, 48
sWave, sB, sHalf, sTown, sTag, sLds = 52, 53, 54, 55, 56, 57
sG = [58, 60]; sThi, sTlo, sN15, sTile, sT0, sMask, s4096, s16k = 62, 63, 64, 65, 66, 67, 68, 69
t0, t1, t2, t3 = 70, 71, 72, 73
sP0, sP1, sFirst, sRedo, sRet, sCnt, sWoff, sXo = 74, 75, 76, 77, 78, 80, 81, 82
STAMPS = list(range(84, 102, 2)) + [4, 6, 8, 10, 12, 14, 16, 18]
vLane, vK, vV, vD, vPoll, vT0, vL, vTS, vC, vF, vS = 1, 2, 3, [4, 5], 6, 7, 8, 12, 16, 32, [64, 96]
NF = 8
def Oreg(q, n): return ("v", 128 + 64 * q + 4 * n) if q < 2 else ("a", 128 + 64 * (q - 2) + 4 * n)
def R4(c, b): return f"{c}[{b}:{b+3}]"
def R2(c, b): return f"{c}[{b}:{b+1}]"
def srd(d, lo, hi, n): return [f"s_mov_b32 s{d}, {lo}", f"s_mov_b32 s{d+1}, {hi}", f"s_mov_b32 s{d+2}, {n}", f"s_mov_b32 s{d+3}, 0x20000"]
S = lambda d: f"s[{d}:{d+3}]"

class Gen:
    def __init__(self, stamps=False, D=4, order=3, thi=2.0**60, tlo=2.0**-60, pollstep=4):
        self.stamps, self.D, self.order, self.thi, self.tlo, self.pollstep = stamps, D, order, thi, tlo, pollstep
        self.nst = 0; self.stnames = []
        self.stubs = []
    def stamp(self, name):
        if not self.stamps: return []
        if name in self.stnames: r = STAMPS[self.stnames.index(name)]
        else:
            r = STAMPS[self.nst]; self.nst += 1; self.stnames.append(name)
        return [f"s_memrealtime s[{r}:{r+1}]"]

    def entry(self):
        L = []
        L += [f"s_cmp_ge_u32 s2, 256", "s_cbranch_scc1 L_end"]
        L += self.stamp("start")
        L += ["s_load_dwordx16 s[4:19], s[0:1], 0", "s_load_dwordx8 s[20:27], s[0:1], 64",
              "v_lshrrev_b32 v2, 6, v0", f"v_and_b32 v{vLane}, 63, v0", f"v_readfirstlane_b32 s{sWave}, v2",
              f"v_and_b32 v8, 15, v{vLane}",
              f"v_lshrrev_b32 v9, 4, v{vLane}",
              f"v_bfe_u32 v10, v{vLane}, 4, 1", f"v_lshrrev_b32 v11, 5, v{vLane}",
              "v_lshl_add_u32 v10, v10, 1, v11",
              f"s_mul_i32 s{sLds}, s{sWave}, {REG}",
              f"s_mov_b32 s{sMask}, 0xffff0000", f"s_movk_i32 s{s4096}, 4096", f"s_movk_i32 s{s16k}, 16384",
              f"s_and_b32 s{sHalf}, s2, 1", f"s_bfe_u32 s{sB}, s2, 0x10001",
              f"s_lshr_b32 s{t0}, s2, 2", f"s_lshl_b32 s{t0}, s{t0}, 1", f"s_add_u32 s{sTown}, s{t0}, s{sHalf}",
              f"s_lshr_b32 s{t1}, s{sWave}, 1", f"s_xor_b32 s{t1}, s{t1}, 1", f"s_xor_b32 s{sTile}, s{sTown}, s{t1}",
              "s_waitcnt lgkmcnt(0)",
              f"s_load_dword s{sTag}, s[{pWs}:{pWs+1}], 0"]
        L += srd(sWS, f"s{pWs}", f"s{pWs+1}", 0x10000000 if self.stamps else WS_USED)
        L += ["s_cmp_ge_u32 s2, 252", "s_cbranch_scc1 L_fold"]
        return L
    def tagcalc(self):
        return [f"@need s{sTag}", f"s_mul_i32 s{sTag}, s{sTag}, 1664525", f"s_add_u32 s{sTag}, s{sTag}, 1013904223"]

    def dma(self, G, NT=16):
        if G >= NT * 16: return [], [], []
        slot = (G % 40) * 1024; h = (G >> 3) & 1; jj = (G >> 2) & 1
        pre = [f"s_add_u32 m0, s{sLds}, {slot + 4096}"] if G % 8 == 0 else []
        ld = [f"global_load_lds_dwordx4 v{vD[jj]}, s[{sG[h]}:{sG[h]+1}] offset:{(G%8)*1024 - 4096} sc1 ;#p{G}"]
        post = [f"s_add_u32 s{sG[h]}, s{sG[h]}, 16384", f"s_addc_u32 s{sG[h]+1}, s{sG[h]+1}, 0"] if G % 8 == 7 else []
        return pre, ld, post
    def front(self):
        L = []
        vXa, vXb, vA0, vA1, vSt, vWa, vWb = 12, 13, 14, 15, 26, 27, 28
        vTr = [2, 3, 4, 5]; vAbs = [8, 9, 10, 11]
        L += [f"s_mul_i32 s{t0}, s{sB}, 2048000", f"s_add_u32 s{sX}, s{pX}, s{t0}", f"s_addc_u32 s{sX+1}, s{pX+1}, 0",
              f"s_mov_b32 s{sX+2}, 2048000", f"s_mov_b32 s{sX+3}, 0x20000",
              f"s_and_b32 s{t1}, s{sWave}, 1", f"s_lshl_b32 s{t2}, s{sTile}, 1", f"s_add_u32 s{t2}, s{t2}, s{t1}",
              f"s_lshl_b32 s{t2}, s{t2}, 13", f"s_lshl_b32 s{t3}, s{sHalf}, 8", f"s_add_u32 s{t2}, s{t2}, s{t3}",
              f"v_lshlrev_b32 v{vXa}, 9, v8", f"v_lshl_add_u32 v{vXa}, v10, 4, v{vXa}", f"v_add_u32 v{vXa}, s{t2}, v{vXa}",
              f"v_xor_b32 v{vXb}, 256, v{vXa}"]
        for i in range(8):
            L.append(f"buffer_load_dwordx4 {R4('v', 32+4*i)}, v{vXa if i < 4 else vXb}, {S(sX)}, 0 offen offset:{(i&3)*64}")
        L += srd(sWq, f"s{pWq}", f"s{pWq+1}", 131072)
        L += [f"v_lshrrev_b32 v16, 3, v{vLane}", f"v_and_b32 v17, 7, v{vLane}", "v_and_b32 v18, 2, v16", "v_xor_b32 v17, v17, v18",
              "v_lshlrev_b32 v16, 9, v16", f"v_lshl_add_u32 v{vA0}, v17, 4, v16", f"s_lshl_b32 s{t3}, s{sWave}, 7",
              f"v_add_u32 v{vA0}, s{t3}, v{vA0}", f"v_xor_b32 v{vA1}, 64, v{vA0}", f"s_mov_b32 s{sWoff}, 0"]
        def wq(p):
            return [f"s_add_u32 m0, s{sLds}, {p*1024}", f"s_mov_b32 s{sWoff}, {p*4096}",
                    f"buffer_load_dwordx4 v{vA1 if (p >> 1) & 1 else vA0}, {S(sWq)}, s{sWoff} offen lds ;#wq{p}"]
        NPRE = 10
        for p in range(NPRE): L += wq(p)
        L += ["s_getpc_b64 s[70:71]", "L_pc:", "s_lshr_b32 s72, s2, 3", "s_lshl_b32 s72, s72, 2", f"s_add_u32 s72, s72, s{sWave}",
              "s_and_b32 s72, s72, 31", "s_lshl_b32 s72, s72, 11", "v_lshlrev_b32 v16, 7, v8", "v_add_u32 v16, s72, v16",
              "v_min_u32 v16, L_end-L_pc, v16", "global_load_dword v24, v16, s[70:71]"]
        L += srd(sWk, f"s{pWk}", f"s{pWk+1}", 131072)
        L += [f"s_mul_i32 s{t0}, s{sB}, 2048000", f"s_add_u32 s{sOut}, s{pOut}, s{t0}", f"s_addc_u32 s{sOut+1}, s{pOut+1}, 0",
              f"s_mov_b32 s{sOut+2}, 2048000", f"s_mov_b32 s{sOut+3}, 0x20000",
              f"s_add_u32 s{t0}, s{t0}, {XA}", f"s_add_u32 s{sXA}, s{pWs}, s{t0}", f"s_addc_u32 s{sXA+1}, s{pWs+1}, 0",
              f"s_mov_b32 s{sXA+2}, 2048000", f"s_mov_b32 s{sXA+3}, 0x20000",
              f"s_mul_i32 s{sT0}, s{sHalf}, 63", f"s_lshl_b32 s{t0}, s{sWave}, 4", f"s_add_u32 s{sT0}, s{sT0}, s{t0}",
              f"s_add_u32 s{t0}, s{sWave}, s{sHalf}", f"s_cmp_ge_u32 s{t0}, 3", f"s_cselect_b32 s{sN15}, 1, 0",
              f"s_cmp_eq_u32 s{t0}, 4", f"s_cselect_b32 s{t0}, 1, 0", f"s_sub_u32 s{sT0}, s{sT0}, s{t0}",
              f"s_lshl_b32 s{t0}, s{sT0}, 14", f"s_lshr_b32 s{t1}, s{sWave}, 1", f"s_lshl_b32 s{t1}, s{t1}, 13",
              f"s_add_u32 s{t2}, s{t0}, s{t1}", f"s_add_u32 s{sG[0]}, s{sXA}, s{t2}", f"s_addc_u32 s{sG[0]+1}, s{sXA+1}, 0",
              f"s_xor_b32 s{t2}, s{t2}, 8192", f"s_add_u32 s{sG[1]}, s{sXA}, s{t2}", f"s_addc_u32 s{sG[1]+1}, s{sXA+1}, 0",
              f"s_mov_b32 s{sThi}, {f2u(self.thi):#x}", f"s_mov_b32 s{sTlo}, {f2u(self.tlo):#x}", f"s_mov_b32 s{sRedo}, 0"]
        L += [f"v_lshlrev_b32 v16, 3, v11", "v_xor_b32 v16, v8, v16", "v_lshlrev_b32 v16, 4, v16", "v_lshl_add_u32 v29, v10, 9, v16",
              f"s_and_b32 s{t1}, s{sWave}, 1", f"s_lshl_b32 s{t1}, s{t1}, 8", f"s_lshl_b32 s{t2}, s{sTile}, 14", f"s_add_u32 s{t1}, s{t1}, s{t2}",
              f"s_lshl_b32 s{t2}, s{sHalf}, 13", f"s_add_u32 s{t1}, s{t1}, s{t2}", f"v_add_u32 v{vSt}, s{t1}, v29",
              f"s_lshl_b32 s{t2}, s{sHalf}, 12", f"s_add_u32 s{t2}, s{t2}, s{sLds}", f"s_add_u32 s{t2}, s{t2}, 32768",
              f"v_lshlrev_b32 v30, 4, v{vLane}", f"v_add_u32 v{vWa}, s{t2}, v30", f"v_xor_b32 v{vWb}, 4096, v{vWa}"]
        L += ["v_lshrrev_b32 v16, 3, v8", "v_and_b32 v18, 2, v10", "v_or_b32 v16, v16, v18", "v_lshlrev_b32 v16, 5, v16",
              "v_bfe_u32 v18, v8, 1, 1", "v_lshl_add_u32 v16, v18, 4, v16", "v_and_b32 v18, 1, v8", "v_lshl_add_u32 v16, v18, 3, v16",
              "v_lshrrev_b32 v18, 2, v8", "v_lshl_add_u32 v16, v18, 7, v16", "v_lshl_add_u32 v16, v10, 10, v16",
              f"v_add_u32 v{vTr[0]}, s{sLds}, v16"] + [f"v_xor_b32 v{vTr[e]}, {e*32}, v{vTr[0]}" for e in (1, 2, 3)]
        L += ["v_lshl_add_u32 v16, v11, 4, v8", "v_lshlrev_b32 v16, 4, v16", "v_and_b32 v18, 1, v9", "v_lshl_add_u32 v16, v18, 3, v16",
              f"s_add_u32 s{t2}, s{sLds}, 24576", f"v_add_u32 v31, s{t2}, v16",
              "v_bfe_u32 v16, v8, 2, 1", "v_bfe_u32 v18, v8, 3, 1", "v_lshl_add_u32 v16, v16, 1, v18", "v_lshlrev_b32 v16, 3, v16",
              "v_and_b32 v18, 3, v8", "v_add_u32 v16, v16, v18", "v_lshlrev_b32 v16, 9, v16", "v_lshl_add_u32 v16, v9, 4, v16",
              f"s_lshl_b32 s{t2}, s{sWave}, 15", f"v_add_u32 v25, s{t2}, v16",
              f"v_lshrrev_b32 v16, 2, v{vLane}", f"s_sub_u32 s{t2}, 15, s{sN15}", f"v_min_u32 v16, s{t2}, v16",
              f"s_lshl_b32 s{t2}, s{sB}, 7", f"s_add_u32 s{t2}, s{t2}, s{sT0}", f"v_add_u32 v16, s{t2}, v16",
              f"v_and_b32 v18, 3, v{vLane}", "v_lshl_add_u32 v16, v16, 2, v18", "v_lshlrev_b32 v16, 7, v16", f"v_add_u32 v{vPoll}, {FLAG_XA}, v16",
              f"v_lshlrev_b32 v0, 26, v{vLane}",
              f"s_lshl_b32 s{t2}, s{sB}, 7", f"s_add_u32 s{t2}, s{t2}, s{sTile}", f"s_lshl_b32 s{t2}, s{t2}, 2",
              f"s_and_b32 s{t1}, s{sWave}, 1", f"s_lshl_b32 s{t1}, s{t1}, 1", f"s_add_u32 s{t2}, s{t2}, s{t1}", f"s_add_u32 s{t2}, s{t2}, s{sHalf}",
              f"s_lshl_b32 s{t2}, s{t2}, 7", f"s_add_u32 s{sXo}, s{t2}, {FLAG_XA}"]
        for j in range(4): L.append(f"v_add_u32 v{vAbs[j]}, {j*REG}, v30")
        for r in range(4): L.append(f"v_mov_b32 v{20+r}, 0x3f803f80")
        L += self.tagcalc() + [f"v_mov_b32 v7, s{sTag}"]
        ln = []
        for i in range(8):
            ln.append(f"{MF} v[16:19], v[20:23], {R4('v', 32+4*i)}, {'0' if i == 0 else 'v[16:19]'}")
            for r in range(4):
                x = 32 + 4 * i + r; d = 64 + 8 * i + 2 * r
                ln += [f"v_lshlrev_b32 v{d}, 16, v{x}", f"v_and_b32 v{d+1}, s{sMask}, v{x}"]
        ln += [f"v_mul_f32 v16, {f2u(-1/256):#x}, v16"]
        for k in range(32): ln.append(f"v_pk_add_f32 {R2('v', 64+2*k)}, {R2('v', 64+2*k)}, v[16:17] op_sel_hi:[1,0]")
        for k in range(32):
            a = 18 + 2 * (k & 1) if False else (18 if k & 1 == 0 else 20)
            if k < 2: ln.append(f"v_pk_mul_f32 {R2('v', a)}, {R2('v', 64+2*k)}, {R2('v', 64+2*k)}")
            else: ln.append(f"v_pk_fma_f32 {R2('v', a)}, {R2('v', 64+2*k)}, {R2('v', 64+2*k)}, {R2('v', a)}")
        ln += ["v_pk_add_f32 v[18:19], v[18:19], v[20:21]", "s_nop 0", "v_add_f32 v18, v18, v19", "s_nop 0", "v_mov_b32 v19, v18", "s_nop 1",
               "v_permlane32_swap_b32 v19, v18", "s_nop 1", "v_add_f32 v18, v18, v19", "s_nop 0", "v_mov_b32 v19, v18", "s_nop 1",
               "v_permlane16_swap_b32 v19, v18", "s_nop 1", "v_add_f32 v18, v18, v19",
               f"v_mov_b32 v19, {f2u(1e-5):#x}", f"v_fmamk_f32 v18, v18, {f2u(1/256):#x}, v19", "v_rsq_f32 v18, v18", "s_nop 0"]
        pub = []
        for i in range(8):
            for r in range(4):
                d = 64 + 8 * i + 2 * r
                pub.append(f"v_pk_mul_f32 {R2('v', d)}, {R2('v', d)}, v[18:19] op_sel_hi:[1,0]")
            for r in range(4):
                d = 64 + 8 * i + 2 * r
                pub.append(f"v_cvt_pk_bf16_f32 v{32+4*i+r}, v{d}, v{d+1}")
            if i < 4: pub.append(f"buffer_store_dwordx4 {R4('v', 32+4*i)}, v{vSt}, {S(sXA)}, {'s%d' % s4096 if i >= 2 else '0'} offen offset:{(i&1)*2048} sc1 ;#xast")
            pub.append(f"ds_write_b128 v{vWa if i < 4 else vWb}, {R4('v', 32+4*i)} offset:{(i&3)*1024}")
        rest = list(range(NPRE, 32)); step = len(ln) // (len(rest) + 1); out = []
        L.append("@need v[32:63]")
        L += self.stamp("x")
        for n, x in enumerate(ln):
            out.append(x)
            if (n + 1) % step == 0 and rest and not x.startswith("s_nop"): out += wq(rest.pop(0))
        for p in rest: out += wq(p)
        L += out + pub
        def g1reads(s):
            k = s & 1; r = []
            for eb in range(4):
                r.append([f"ds_read_b64_tr_b16 {R2('a', 32*k+4*eb+2*j)}, v{vTr[eb]} offset:{s*4096 + j*512}" for j in range(2)])
            b = [f"ds_read_b128 {R4('a', 32*k+16+4*qb)}, v{vAbs[qb]} offset:{32768 + s*1024}" for qb in range(4)]
            return r, b
        r, b = g1reads(0)
        L += ["@vm wq3"] + [x for y in r for x in y] + ["@lg0", "s_barrier"] + self.stamp("b1") + b
        wk = [f"buffer_load_dwordx4 {R4('v', 128+(ks*4+db)*4)}, v25, {S(sWk)}, {'s%d' % s16k if db >= 2 else '0'} offen offset:{(db&1)*2048 + ks*64}"
              for ks in range(8) for db in range(4)]
        mf = []; gaps = [[] for _ in range(128)]
        for s in range(8):
            k = s & 1
            for eb in range(4):
                for qb in range(4):
                    d = 64 + (eb * 4 + qb) * 4
                    mf.append(f"{MF} {R4('v', d)}, {R4('a', 32*k+4*eb)}, {R4('a', 32*k+16+4*qb)}, {R4('v', d) if s else '0'}")
            g = 16 * s
            if s < 7:
                r, b = g1reads(s + 1)
                gaps[g] += [f"@vm wq{4*s+7}"] + r[0]; gaps[g + 1] += b[:2]; gaps[g + 3] += b[2:]
                gaps[g + 4] += r[1]; gaps[g + 5] += r[2]; gaps[g + 7] += r[3]
                gaps[g + 15].append(f"@need a[{32*(1-k)}:{32*(1-k)+31}]")
            for n in range(4): gaps[g + 2 + 4 * n].append(wk[4 * s + n])
            if s == 5:
                gaps[g + 8] += ["@vm xast", f"buffer_store_dword v7, v0, {S(sWS)}, s{sXo} offen sc1"]
        L += weave(mf, gaps)
        L += self.stamp("g1")
        for eb in range(4):
            for qb in range(4):
                d = 64 + (eb * 4 + qb) * 4
                L += [f"v_cvt_pk_bf16_f32 v{d}, v{d}, v{d+1}", f"v_cvt_pk_bf16_f32 v{d+1}, v{d+2}, v{d+3}",
                      f"ds_write_b64 v31, {R2('v', d)} offset:{qb*2048 + (eb>>1)*1024 + (eb&1)*512}"]
        L += [f"v_add_u32 v{vK}, s{sLds}, v29",
              f"v_lshrrev_b32 v16, 2, v{vLane}", f"v_bfe_u32 v17, v{vLane}, 1, 1", "v_lshlrev_b32 v18, 3, v17", "v_xor_b32 v16, v16, v18",
              "v_lshlrev_b32 v16, 4, v16", "v_lshl_add_u32 v16, v17, 9, v16", f"v_and_b32 v17, 1, v{vLane}", "v_lshl_add_u32 v16, v17, 3, v16",
              f"v_add_u32 v{vV}, s{sLds}, v16",
              f"s_and_b32 s{t1}, s{sWave}, 1", f"s_lshl_b32 s{t1}, s{t1}, 12", f"s_add_u32 s{t2}, s{t1}, 4096", f"s_xor_b32 s{t1}, s{t1}, 4096",
              f"v_add_u32 v{vD[0]}, s{t2}, v30", f"v_add_u32 v{vD[1]}, s{t1}, v30"]
        vR = [12, 13, 14, 15]
        for j in range(4): L += [f"s_xor_b32 s{t1}, s{sWave}, {j}", f"s_mul_i32 s{t1}, s{t1}, {REG}", f"v_add_u32 v{vR[j]}, s{t1}, v30"]
        L += [f"v_mov_b32 v26, {f2u(LOG2E/16):#x}", "@lg0", "s_barrier"]
        def g2reads(ks):
            return [f"ds_read_b128 {R4('a', 16*(ks&1)+4*qb)}, v{vAbs[ks>>1]} offset:{24576 + qb*2048 + (ks&1)*1024}" for qb in range(4)]
        L += g2reads(0)
        mf = []; gaps = [[] for _ in range(128)]; G = 0
        ps = self.pollstep
        for ks in range(8):
            for db in range(4):
                for qb in range(4):
                    d = 64 + (db * 4 + qb) * 4
                    mf.append(f"{MF} {R4('v', d)}, {R4('v', 128+(ks*4+db)*4)}, {R4('a', 16*(ks&1)+4*qb)}, {R4('v', d) if ks else '0'}")
            g = 16 * ks
            if ks < 7:
                b = g2reads(ks + 1); gaps[g] += b[:2]; gaps[g + 1] += b[2:]
                gaps[g + 15].append(f"@need a[{16*(1-(ks&1))}:{16*(1-(ks&1))+15}] v[{128+(ks+1)*16}:{128+(ks+1)*16+15}]")
            if ks == ps - 2: gaps[g + 2].append(f"buffer_load_dword v7, v{vPoll}, {S(sWS)}, 0 offen sc1")
            if ks == ps - 1:
                gaps[g + 12] += ["@need v7", f"v_cmp_ne_u32 vcc, s{sTag}, v7"]
                gaps[g + 14] += ["s_cbranch_vccnz L_spin_xa", "L_back_xa:"]
                self.stubs.append(self.spin("xa", vPoll, 7))
            if ks >= ps:
                for n in range(4):
                    pre, ld, post = self.dma(G); G += 1
                    gaps[g + 4 * n + 1] += pre; gaps[g + 4 * n + 2] += ld; gaps[g + 4 * n + 3] += post
        L += weave(mf, gaps)
        L += self.stamp("g2")
        for sp in range(2):
            for qb in range(4):
                t = 32 + 4 * (qb * 2 + sp)
                for hb in range(2):
                    d = 64 + ((2 * sp + hb) * 4 + qb) * 4
                    L += [f"v_pk_mul_f32 {R2('v', d)}, {R2('v', d)}, v[26:27] op_sel_hi:[1,0]", f"v_pk_mul_f32 {R2('v', d+2)}, {R2('v', d+2)}, v[26:27] op_sel_hi:[1,0]"]
                for hb in range(2):
                    d = 64 + ((2 * sp + hb) * 4 + qb) * 4
                    L += [f"v_cvt_pk_bf16_f32 v{t+2*hb}, v{d}, v{d+1}", f"v_cvt_pk_bf16_f32 v{t+2*hb+1}, v{d+2}, v{d+3}"]
                L.append(f"ds_write_b128 v{vR[0]}, {R4('v', t)} offset:{32768 + (qb*2+sp)*1024}")
                if G < 24:
                    pre, ld, post = self.dma(G); G += 1
                    L += pre + (["s_nop 0"] if pre else []) + ld + post
        while G < 24:
            pre, ld, post = self.dma(G); G += 1
            L += pre + (["s_nop 0"] if pre else []) + ld + post
        for r in range(16): L.append(f"v_mov_b32 v{vC+r}, 0")
        for q in range(4): L.append(f"v_mov_b32 v{vL+q}, 0")
        L += ["@lg0", "s_barrier"] + self.stamp("b3")
        def qread(s): return [f"ds_read_b128 {R4('a', 32*qb+4*s)}, v{vR[s>>1]} offset:{32768 + (qb*2+(s&1))*1024}" for qb in range(4)]
        D = self.D
        L += qread(0) + ["@vm p3"] + self.kread(0, 0, 0) + self.kread(0, 1, 1) + qread(1) + self.kread(0, 2, 2) + self.kread(0, 3, 3)
        mf = []; gaps = [[] for _ in range(64)]
        for n in range(16): mf += self.qk(n, n % NF, 0)
        mf = self.reorder(mf, self.order & 1)
        for st in range(16):
            g = 4 * st; i = st + D
            t, n = (0, i) if i < 16 else (1, i - 16)
            if n % 2 == 0: gaps[g].append(f"@vm p{t*16+n+1}")
            gaps[g] += self.kread(t, n, i % NF)
            if st % 2 == 0 and st // 2 + 2 < 8:
                qq = qread(st // 2 + 2); gaps[g + 1] += qq[:2]; gaps[g + 5] += qq[2:]
            if st % 2 == 0:
                pre, ld, post = self.dma(G); G += 1
                gaps[g + 1] += pre; gaps[g + 2] += ld; gaps[g + 3] += post
            if st % 2 == 1:
                nx = st + 1
                need = f"@need v[{vF+4*(nx%NF)}:{vF+4*(nx%NF)+7}]"
                if nx < 16: need += "".join(f" {R4('a', 32*qb+4*(nx//2))}" for qb in range(4))
                gaps[g + 3].append(need)
        gaps[62].append("s_barrier")
        L += weave(mf, gaps)
        self.G = G; self.nhead = 0
        return L

    def wload(self, c, reg, n, va=0):
        ld = [f"buffer_load_dwordx4 {R4(c, reg)}, v{va}, {S(sWS)}, s{sWoff} offen offset:{(n&3)*1024} sc1"]
        post = [f"s_add_u32 s{sWoff}, s{sWoff}, {4096 if n & 31 != 31 else 4096 + 0x20000 - 0x8000}"] if n & 3 == 3 else []
        return ld, post

    def spin(self, name, vaddr, vdst):
        return [f"L_spin_{name}:", f"s_mov_b32 s{sCnt}, 0", f"L_spinl_{name}:", "s_sleep 1",
                f"buffer_load_dword v{vdst}, v{vaddr}, {S(sWS)}, 0 offen sc1", f"s_add_u32 s{sCnt}, s{sCnt}, 1",
                f"s_cmp_gt_u32 s{sCnt}, 0x10000", "s_waitcnt vmcnt(0)", f"s_cbranch_scc1 L_back_{name}",
                f"v_cmp_ne_u32 vcc, s{sTag}, v{vdst}", f"s_cbranch_vccnz L_spinl_{name}", f"s_branch L_back_{name}"]

    def F(self, f): return R4("v", vF + 4 * f)
    def kread(self, t, n, f):
        s, kb = n >> 1, n & 1
        return [f"ds_read_b128 {self.F(f)}, v{vK} offset:{((t*16 + 2*s) % 40)*1024 + kb*256}"]
    def vread(self, t, n, f):
        return [f"ds_read_b64_tr_b16 {R2('v', vF+4*f+2*j)}, v{vV} offset:{((t*16+n) % 40)*1024 + j*256}" for j in range(2)]
    def qk(self, n, f, buf, czero=False):
        s, kb = n >> 1, n & 1; o = []
        for q in range(4):
            d = vS[buf] + 8 * q + 4 * kb
            C = R4("v", d) if s else ("0" if czero else R4("v", vC + 4 * q))
            o.append(f"{MF} {R4('v', d)}, {self.F(f)}, {R4('a', 32*q+4*s)}, {C}")
        return o
    def pv(self, n, f, buf, zero):
        o = []
        for q in range(4):
            oc, d = Oreg(q, n)
            o.append(f"{MF} {R4(oc, d)}, {self.F(f)}, {R4('v', vS[buf]+8*q)}, {'0' if zero else R4(oc, d)}")
        return o
    def reorder(self, mf, on):
        if not on: return mf
        out = []
        for i in range(0, len(mf), 8):
            for n in range(4): out += [mf[i + n], mf[i + 4 + n]]
        return out
    def softmax(self, buf):
        seq = []; pend = []
        for q in range(4):
            b = vS[buf] + 8 * q; ts = vTS + q
            for r in range(8):
                seq.append(f"v_exp_f32 v{b+r}, v{b+r}")
                seq += pend; pend = []
                if r == 1: pend.append(f"v_add_f32 v{ts}, v{b}, v{b+1}")
                if r > 1: pend.append(f"v_add_f32 v{ts}, v{ts}, v{b+r}")
                if r % 2 == 1: pend.append(f"v_cvt_pk_bf16_f32 v{b+r//2}, v{b+r-1}, v{b+r}")
        seq.append(f"v_max3_f32 v{vT0}, v{vTS}, v{vTS+1}, v{vTS+2}")
        seq += pend
        seq += [f"v_add_f32 v{vT0}, v{vT0}, v{vTS+3}", f"v_cmp_nge_f32 vcc, s{sThi}, v{vT0}"]
        return seq
    NHEAD = 28
    def iteration(self, j, last, name):
        D = self.D; p = j & 1
        gaps = [[] for _ in range(128)]
        a = []; b = []
        for i in range(16): a += self.qk(i, i % NF, 1 - p); b += self.pv(i, i % NF, p, j == 0)
        mf = ([None] * 64 if last else self.reorder(a, self.order & 1)) + self.reorder(b, self.order & 2)
        G = self.G
        for st in range(32):
            i = st + D; g = 4 * st
            if i < 16: t, n, isk = j + 1, i, True
            elif i < 32: t, n, isk = j, i - 16, False
            else: t, n, isk = j + 2, i - 32, True
            if isk:
                if not last and t < 16:
                    if n % 2 == 0 and (n == 0 or n >= 8 or j == 0): gaps[max(g - 1, 0)].append(f"@vm p{t*16 + (7 if n == 0 else n + 1)}")
                    gaps[g] += self.kread(t, n, i % NF)
            else: gaps[g] += self.vread(t, n, i % NF)
            if (st >= 16 or (j == 0 and st % 2 == 0 and G < 40)) and not last:
                pre, ld, post = self.dma(G); G += 1
                gaps[g + 1] += pre; gaps[g + 2] += ld; gaps[g + 3] += post
            if st % 2 == 1 and (st >= 15 or not last) and not (last and st == 31):
                nx = (st + 1) % NF
                gaps[g + 3].append(f"@need v[{vF+4*nx}:{vF+4*nx+7}]")
        self.G = G
        gaps[63].append(f"s_cbranch_vccnz L_stub_{name}")
        if j == 0:
            gaps[63] += [f"L_mid_{name}:"]
        ladd = [f"v_add_f32 v{vL+q}, v{vL+q}, v{vTS+q}" for q in range(4)]
        gaps[65] += ladd[:2]; gaps[67] += ladd[2:]
        self.stubs.append([f"L_stub_{name}:", f"s_mov_b32 s{sP0}, {((j*16) % 40)*1024}", f"s_mov_b32 s{sP1}, {((j*16+8) % 40)*1024}",
                           f"s_mov_b32 s{sFirst}, {int(j == 0)}", f"s_call_b64 s[{sRet}:{sRet+1}], L_rare{p}", f"s_branch L_back_{name}"])
        if j == 11:
            ex = [f"v_and_b32 v{vPoll}, 15, v{vLane}", f"s_lshl_b32 s{t0}, s{sB}, 7", f"v_lshrrev_b32 v0, 2, v{vPoll}", f"s_sub_u32 s{t1}, s{sTown}, 1",
                  f"v_add_u32 v0, s{t1}, v0", "v_max_i32 v0, 0, v0", "v_min_u32 v0, 124, v0", f"v_add_u32 v0, s{t0}, v0",
                  f"s_add_u32 s{t1}, s{sWave}, {(FLAG_FOLD - FLAG_XA) // 512}", f"v_cmp_gt_u32 s[{t2}:{t3}], 12, v{vPoll}", f"v_and_b32 v{vPoll}, 3, v{vPoll}",
                  f"v_mov_b32 v{vT0}, s{t1}", f"v_cndmask_b32 v0, v{vT0}, v0, s[{t2}:{t3}]", f"v_lshl_add_u32 v0, v0, 2, v{vPoll}", "v_lshlrev_b32 v0, 7, v0",
                  f"v_add_u32 v{vPoll}, {FLAG_XA}, v0"]
            k = 0
            for x in ex:
                gaps[69 + 2 * k].append(x)
                if not x.startswith("s_"): k += 1
        if j == 12:
            gaps[2].append(f"buffer_load_dword v0, v{vPoll}, {S(sWS)}, 0 offen sc1")
            gaps[69] += ["@need v0", f"v_cmp_ne_u32 vcc, s{sTag}, v0"]
            gaps[73] += ["s_cbranch_vccnz L_spin_tl", "L_back_tl:"]
            self.stubs.append(self.spin("tl", vPoll, 0))
            ex = [f"s_lshl_b32 s{t0}, s{sTown}, 14", f"v_subrev_u32 v0, s{sLds}, v{vK}", f"s_lshl_b32 s{t1}, s{sWave}, 12", f"v_xor_b32 v{vPoll}, 128, v0",
                  f"s_add_u32 s{t0}, s{t0}, s{t1}", f"v_add_u32 v0, s{t0}, v0", f"s_sub_u32 s{t0}, s{t0}, {16384 - 256}", f"v_add_u32 v{vPoll}, s{t0}, v{vPoll}",
                  f"v_bfe_u32 v{vT0}, v{vLane}, 3, 1", f"v_mul_u32_u24 v{vT0}, {32768 - 256}, v{vT0}", f"v_add_u32 v{vPoll}, v{vPoll}, v{vT0}"]
            k = 0
            for x in ex:
                gaps[77 + 2 * k].append(x)
                if not x.startswith("s_"): k += 1
        if j == 13:
            for n in range(6):
                rb, ss = n >> 1, n & 1; g = 4 * (24 + n)
                off = ss * 2048 + (256 if rb == 1 else 0)
                gaps[g + 1].append(f"s_add_u32 m0, s{sLds}, {16384 + n*1024 - off}")
                gaps[g + 2].append(f"buffer_load_dwordx4 v{vPoll if rb == 2 else 0}, {S(sXA)}, 0 offen offset:{off} sc1 lds ;#x48")
        if last:
            gaps[0] = [f"s_lshl_b32 s{sWoff}, s{sWave}, 15", f"s_add_u32 s{sWoff}, s{sWoff}, {WG_F}", f"v_lshlrev_b32 v0, 4, v{vLane}"] + gaps[0]
            gaps[64].append("@vm x48")
            for n in range(16):
                ld, post = self.wload("a", 4 * n, n)
                gaps[64 + 4 * n + 2] += ld; gaps[64 + 4 * n + 3] += post
        sm = self.softmax(p)
        cur = sm[self.nhead:]
        left = spread(gaps, cur, list(range(5 if j == 0 else 0, 61)), force=(j == 0))
        if left: gaps[62] += left
        if not last:
            nx = self.softmax(1 - p)
            if j == 14:
                left = spread(gaps, nx[:-1], list(range(69, 128)), force=True)
                self.nhead = len(nx) - 1 - len(left)
            else:
                left = spread(gaps, nx[:self.NHEAD], list(range(69, 128)), force=True); self.nhead = self.NHEAD - len(left)
        out = weave(mf, gaps)
        if j == 0:
            k = out.index(f"L_mid_{name}:")
            out[k:k + 1] = [f"v_min3_f32 v{vT0}, v{vTS}, v{vTS+1}, v{vTS+2}", f"v_min_f32 v{vT0}, v{vT0}, v{vTS+3}",
                            f"v_cmp_nle_f32 vcc, s{sTlo}, v{vT0}", f"s_cbranch_vccnz L_stub_{name}", f"L_back_{name}:"]
        else:
            k = out.index(f"s_cbranch_vccnz L_stub_{name}")
            out.insert(k + 1, f"L_back_{name}:")
        return out

    def scaleO(self, q, f):
        L = []
        oc, d = Oreg(q, 0)
        if oc == "v":
            for r in range(64): L.append(f"v_mul_f32 v{d+r}, v{f}, v{d+r}")
        else:
            for r in range(0, 64, 4):
                L += [f"v_accvgpr_read_b32 v{48+k}, a{d+r+k}" for k in range(4)]
                L += [f"v_mul_f32 v{48+k}, v{f}, v{48+k}" for k in range(4)]
                L += [f"v_accvgpr_write_b32 a{d+r+k}, v{48+k}" for k in range(4)]
        return L
    def rare(self, p):
        L = [f"L_rare{p}:", "s_waitcnt lgkmcnt(0)", "s_nop 7", "s_nop 7"]
        b = vS[p]; o = vS[1 - p]
        for h in range(2):
            L.append(f"v_add_u32 v{vT0}, s{sP0 + h}, v{vK}")
            for grp in range(2):
                for k in range(4):
                    n = 4 * grp + k
                    L.append(f"ds_read_b128 {self.F(4+k)}, v{vT0} offset:{(n>>1)*2048 + (n&1)*256}")
                L.append("s_waitcnt lgkmcnt(0)")
                for k in range(4): L += self.qk(8 * h + 4 * grp + k, 4 + k, p, czero=True)
        L += ["s_nop 7", "s_nop 7"]
        for q in range(4):
            s = b + 8 * q; m = vTS + q
            L += [f"v_max3_f32 v{m}, v{s}, v{s+1}, v{s+2}", f"v_max3_f32 v{m}, v{m}, v{s+3}, v{s+4}", f"v_max3_f32 v{m}, v{m}, v{s+5}, v{s+6}", f"v_max_f32 v{m}, v{m}, v{s+7}",
                  f"v_mov_b32 v{vT0}, v{m}", "s_nop 1", f"v_permlane32_swap_b32 v{vT0}, v{m}", "s_nop 1", f"v_max_f32 v{m}, v{m}, v{vT0}",
                  f"v_mov_b32 v{vT0}, v{m}", "s_nop 1", f"v_permlane16_swap_b32 v{vT0}, v{m}", "s_nop 1", f"v_max_f32 v{m}, v{m}, v{vT0}",
                  f"v_sub_f32 v{m}, 0, v{m}"]
        L += [f"s_cmp_lg_u32 s{sFirst}, 0", f"s_cbranch_scc1 L_rare{p}_a"]
        for q in range(4): L.append(f"v_min_f32 v{vTS+q}, v{vTS+q}, v{vC+4*q}")
        for q in range(4):
            L += [f"v_sub_f32 v{vT0}, v{vTS+q}, v{vC+4*q}", f"v_exp_f32 v{vT0}, v{vT0}", "s_nop 0", f"v_mul_f32 v{vL+q}, v{vT0}, v{vL+q}"] + self.scaleO(q, vT0)
        L.append(f"L_rare{p}_a:")
        for q in range(4):
            L.append(f"v_sub_f32 v{vT0}, v{vTS+q}, v{vC+4*q}")
            for r in range(8): L += [f"v_add_f32 v{o+8*q+r}, v{o+8*q+r}, v{vT0}", f"v_add_f32 v{b+8*q+r}, v{b+8*q+r}, v{vTS+q}"]
            for r in range(4): L.append(f"v_mov_b32 v{vC+4*q+r}, v{vTS+q}")
        L += self.softmax(p)[:-1] + ["s_nop 1", f"s_setpc_b64 s[{sRet}:{sRet+1}]"]
        return L

    def tail(self):
        L = []
        R1, R2o, X48, LM, ST, GB, UB, ZB, OB = 24576, 0, 16384, 22528, 23040, 24576, 12288, 0, 4096
        vR = [22, 23, 24, 25]; vSel = 16
        wq = []
        def ureg(n): return (144 + 4 * n if n < 12 else 208 + 4 * (n - 12)) if n < 24 else (128 + 4 * (n - 24) if n < 28 else 192 + 4 * (n - 28))
        for n in range(16, 32): wq.append(self.wload("a", 4 * n, n))
        for n in range(32): wq.append(self.wload("v", ureg(n), n))
        for n in range(32): wq.append(self.wload("a", 4 * n, n))
        for n in range(32): wq.append(self.wload("a", ureg(n), n))
        def wnext():
            ld, post = wq.pop(0); return ld + post
        L += self.stamp("loopend")
        L += ["v_permlane32_swap_b32 v8, v10", "v_permlane32_swap_b32 v9, v11", f"v_permlane32_swap_b32 v{vC}, v{vC+8}", f"v_permlane32_swap_b32 v{vC+4}, v{vC+12}",
              "v_add_f32 v8, v8, v10", "v_add_f32 v10, v9, v11"] + wnext() + \
             [f"v_permlane16_swap_b32 v{vC}, v{vC+4}", "v_permlane16_swap_b32 v8, v10", "s_nop 0", f"v_mov_b32 v9, v{vC}", "v_add_f32 v8, v8, v10"]
        for j in range(4): L += [f"s_xor_b32 s{t1}, s{sWave}, {j}", f"s_mul_i32 s{t1}, s{t1}, {REG}", f"v_add_u32 v{vR[j]}, s{t1}, v0"]
        L += [f"v_lshlrev_b32 v26, 3, v{vLane}"]
        for j in range(4): L.append(f"v_sub_u32 v{28+j}, v{vR[j]}, v26")
        L += ["L_redo:", f"ds_write_b64 v28, v[8:9] offset:{LM}"]
        k = 0
        for j in (1, 2, 3):
            for qb in range(2):
                for kp in range(2):
                    o = 128 + 64 * qb + 16 * j + 8 * kp; t = 32 + 4 * (k % 8); k += 1
                    L += [f"v_cvt_pk_bf16_f32 v{t+r}, v{o+2*r}, v{o+2*r+1}" for r in range(4)]
                    L.append(f"ds_write_b128 v{vR[0]}, {R4('v', t)} offset:{R1 + ((j-1)*4 + qb*2 + kp)*1024}")
                    L.append(f"@W{k}")
        t0w = [x for _ in range(11) for x in [wnext()]]
        out = []
        for x in L:
            if x.startswith("@W"):
                n = int(x[2:]) - 1
                if n < len(t0w): out += [f"s_cbranch_scc1 L_skw{n}"] + t0w[n] + [f"s_cmp_lg_u32 s{sRedo}, 0", f"L_skw{n}:"] if False else t0w[n]
            else: out.append(x)
        L = out
        L += [f"v_and_b32 v26, 15, v{vLane}", f"v_lshrrev_b32 v27, 4, v{vLane}", "v_lshlrev_b32 v27, 2, v27", "v_sub_u32 v26, v26, v27",
              f"v_mov_b32 v{vSel}, 0", f"v_mov_b32 v{vSel+1}, 0", f"v_mov_b32 v{vSel+4}, 0", f"v_mov_b32 v{vSel+5}, 0",
              "v_and_b32 v27, 1, v26", "v_lshlrev_b32 v27, 4, v27", "v_mov_b32 v7, 0x3f80", "v_lshlrev_b32 v27, v27, v7", "v_lshrrev_b32 v26, 1, v26",
              "v_cmp_eq_u32 vcc, 0, v26", "s_nop 1", f"v_cndmask_b32 v{vSel+2}, v{vSel}, v27, vcc", "v_cmp_eq_u32 vcc, 1, v26", "s_nop 1", f"v_cndmask_b32 v{vSel+3}, v{vSel}, v27, vcc"]
        Alo, Ahi = R4("v", vSel + 2), R4("v", vSel)
        L += ["@lg0", "s_barrier"] + self.stamp("B1")
        L += [f"ds_read_b64 {R2('v', 8+2*j)}, v{28+j} offset:{LM}" for j in (1, 2, 3)]
        k = 0; rd = []; mf = []
        for j in (1, 2, 3):
            for qb in range(2):
                for kp in range(2):
                    t = 64 + 4 * k; k += 1; o = 128 + 64 * qb + 8 * kp
                    rd.append(f"ds_read_b128 {R4('v', t)}, v{vR[j]} offset:{R1 + ((j-1)*4 + qb*2 + kp)*1024}")
                    mf += [f"{MF} {R4('v', o)}, {Alo}, {R4('v', t)}, {R4('v', o)}", f"{MF} {R4('v', o+4)}, {Ahi}, {R4('v', t)}, {R4('v', o+4)}"]
        L += rd
        L += ["v_xor_b32 v26, v9, v11", "v_xor_b32 v27, v9, v13", "v_xor_b32 v7, v9, v15", "v_or3_b32 v26, v26, v27, v7", "v_cmp_ne_u32 vcc, 0, v26",
              "s_cbranch_vccnz L_slowA", "L_back_slowA:", "v_add_f32 v8, v8, v10", "v_add_f32 v12, v12, v14"]
        gaps = [[] for _ in range(24)]
        for n in range(6):
            ld, post = wq.pop(0); gaps[4 * n + 1] += ld; gaps[4 * n + 2] += post
        gaps[0] += ["v_add_f32 v8, v8, v12", f"v_lshlrev_b32 v26, 3, v{vLane}"]
        gaps[2] += [f"s_lshl_b32 s{t0}, s2, 2", f"s_add_u32 s{t0}, s{t0}, s{sWave}"]
        gaps[3] += [f"s_lshl_b32 s{sXo}, s{t0}, 13", f"s_add_u32 s{sXo}, s{sXo}, {XCH}"]
        gaps[4] += [f"s_lshl_b32 s{t3}, s{t0}, 7", f"s_add_u32 s{t3}, s{t3}, {FLAG_XCH}"]
        gaps[6] += [f"s_add_u32 s{t2}, s{sXo}, 4096"]
        gaps[7] += [f"buffer_store_dwordx2 v[8:9], v26, {S(sWS)}, s{t2} offen sc1"]
        def bread(fi, buf):
            s, rb = fi
            return f"ds_read_b128 {R4('v', 48+4*buf)}, v{vR[s>>1]} offset:{X48 + (rb*2 + (s&1))*1024}"
        fl = [(s, rb) for s in range(8) for rb in range(3)] + [(s, rb) for s in range(8) for rb in range(2)]
        for n in range(3): gaps[18 + 2 * n if n else 16].append(bread(fl[n], n))
        L += weave(mf, gaps) + ["s_nop 3"]
        for qb in range(2):
            for kp in range(2):
                o = 128 + 64 * qb + 8 * kp; t = 32 + 4 * (qb * 2 + kp)
                L += [f"v_cvt_pk_bf16_f32 v{t+r}, v{o+2*r}, v{o+2*r+1}" for r in range(4)]
                L.append(f"buffer_store_dwordx4 {R4('v', t)}, v0, {S(sWS)}, s{sXo} offen offset:{(qb*2+kp)*1024} sc1 ;#xch")
        L += self.stamp("pub")
        gacc = lambda eb, rb: 64 + (rb * 4 + eb) * 4
        uacc = lambda eb, rb: (112 if rb == 0 else 32) + 4 * eb
        mf = []; gaps = [[] for _ in range(160)]
        for n, (s, rb) in enumerate(fl):
            for eb in range(4):
                if n < 24: d = gacc(eb, rb); w = R4("a", (s * 4 + eb) * 4)
                else: d = uacc(eb, rb); w = R4("v", ureg(s * 4 + eb))
                mf.append(f"{MF} {R4('v', d)}, {w}, {R4('v', 48+4*(n%4))}, {R4('v', d) if s else '0'}")
            g = 4 * n
            if n + 3 < 40: gaps[g].append(bread(fl[n + 3], (n + 3) % 4))
            if n + 1 < 40:
                s2, rb2 = fl[n + 1]
                wr = f"a[{s2*16}:{s2*16+15}]" if n + 1 < 24 else " ".join(R4("v", ureg(s2 * 4 + e)) for e in range(4))
                gaps[g + 3].append(f"@need {R4('v', 48+4*((n+1)%4))} {wr}")
            if n == 22: gaps[g + 2] += ["@vm xch", f"buffer_store_dword v7, v6, {S(sWS)}, s{t3} offen sc1"]
            else:
                ld, post = wq.pop(0); gaps[g + 2] += ld; gaps[g + 3] += post
        ph2 = [f"v_mov_b32 v7, s{sTag}", f"v_lshlrev_b32 v6, 26, v{vLane}"]
        tmps = [2, 12, 112, 116]; k = 0; pend = []
        for j in (1, 2, 3):
            for qb in range(2):
                for kp in range(2):
                    for hb in range(2):
                        o = 128 + 64 * qb + 16 * j + 8 * kp + 4 * hb; t = tmps[k % 2]; k += 1
                        ph2 += [f"v_accvgpr_read_b32 v{t+r}, a{o+r}" for r in range(4)] + pend
                        ph2 += [f"v_cvt_pk_bf16_f32 v{t}, v{t}, v{t+1}", f"v_cvt_pk_bf16_f32 v{t+1}, v{t+2}, v{t+3}"]
                        pend = [f"ds_write_b64 v{vR[0]}, {R2('v', t)} offset:{R2o + ((j-1)*4 + qb*2 + kp)*1024 + hb*8}"]
        ph2 += pend
        left = spread(gaps, ph2, list(range(0, 160)), force=True)
        L += weave(mf, gaps) + left
        L += ["@lg0", "s_barrier"] + self.stamp("B1p")
        c0 = -2 * 0.7978845608028654 * LOG2E; c1 = c0 * 0.044715
        L += [f"v_mov_b32 v2, {f2u(c0):#x}", f"v_mov_b32 v3, {f2u(c1):#x}"]
        ex = []
        L += [f"v_and_b32 v4, 15, v{vLane}", f"v_lshrrev_b32 v5, 4, v{vLane}", f"s_mul_i32 s{t0}, s{sWave}, 3840", f"s_add_u32 s{t0}, s{t0}, {DW_F}", "v_lshlrev_b32 v12, 4, v4",
              f"s_lshl_b32 s{t1}, s{sTown}, 14", f"s_lshl_b32 s{t2}, s{sWave}, 7", f"s_add_u32 s{t1}, s{t1}, s{t2}",
              "v_lshlrev_b32 v13, 9, v4", "v_lshl_add_u32 v13, v5, 4, v13", f"v_add_u32 v13, s{t1}, v13", "v_add_u32 v14, 8192, v13"]
        for i in range(15): ex.append([f"buffer_load_dwordx4 {R4('v', 128+4*i)}, v12, {S(sWS)}, s{t0} offen offset:{i*256} sc1"])
        for rb in range(2):
            for ep in range(2): ex.append([f"buffer_load_dwordx4 {R4('v', 240+4*(rb*2+ep))}, v{13+rb}, {S(sX)}, 0 offen offset:{ep*64}"])
        nwd = len(wq) - 32
        exq = ex + [a + b for a, b in wq[:nwd + 24]]; wq = wq[nwd + 24:]
        def gelu(regs, every, extra):
            o = []; cnt = 0
            for d in regs:
                x0, x1, y0, y1 = R2("v", d), R2("v", d + 2), R2("v", 48), R2("v", 50)
                blk = [f"v_pk_mul_f32 {y0}, {x0}, {x0}", f"v_pk_mul_f32 {y1}, {x1}, {x1}",
                       f"v_pk_fma_f32 {y0}, {y0}, v[2:3], v[2:3] op_sel:[0,1,0] op_sel_hi:[1,1,0]", f"v_pk_fma_f32 {y1}, {y1}, v[2:3], v[2:3] op_sel:[0,1,0] op_sel_hi:[1,1,0]",
                       f"v_pk_mul_f32 {y0}, {y0}, {x0}", f"v_pk_mul_f32 {y1}, {y1}, {x1}",
                       "v_exp_f32 v48, v48", "v_exp_f32 v49, v49", "v_exp_f32 v50, v50", "v_exp_f32 v51, v51",
                       f"v_pk_add_f32 {y0}, {y0}, 1.0 op_sel_hi:[1,0]", f"v_pk_add_f32 {y1}, {y1}, 1.0 op_sel_hi:[1,0]",
                       "v_rcp_f32 v48, v48", "v_rcp_f32 v49, v49", "v_rcp_f32 v50, v50", "v_rcp_f32 v51, v51",
                       f"v_pk_mul_f32 {x0}, {x0}, {y0}", f"v_pk_mul_f32 {x1}, {x1}, {y1}"]
                o += blk[:6] + extra(0, d) + blk[6:12] + extra(1, d) + blk[12:] + extra(2, d)
            return o
        def ex_g(k, d):
            if k < 2 and exq: return exq.pop(0)
            if k == 2:
                rb = (d - 64) // 16; first = (d - 64) % 16 == 0; sA, qA = 52 + 2 * rb, 58 + 2 * rb
                x0, x1 = R2("v", d), R2("v", d + 2)
                if first: return [f"v_pk_add_f32 {R2('v', sA)}, {x0}, {x1}", f"v_pk_mul_f32 {R2('v', qA)}, {x0}, {x0}", f"v_pk_fma_f32 {R2('v', qA)}, {x1}, {x1}, {R2('v', qA)}"]
                return [f"v_pk_add_f32 {R2('v', sA)}, {R2('v', sA)}, {x0}", f"v_pk_fma_f32 {R2('v', qA)}, {x0}, {x0}, {R2('v', qA)}",
                        f"v_pk_add_f32 {R2('v', sA)}, {R2('v', sA)}, {x1}", f"v_pk_fma_f32 {R2('v', qA)}, {x1}, {x1}, {R2('v', qA)}"]
            return []
        L += gelu([64 + 4 * n for n in range(12)], 0, ex_g)
        L += ["v_add_f32 v52, v52, v53", "v_add_f32 v54, v54, v55", "v_add_f32 v56, v56, v57", "v_add_f32 v58, v58, v59", "v_add_f32 v60, v60, v61", "v_add_f32 v62, v62, v63",
              "v_mov_b32 v53, v54", "v_mov_b32 v59, v60", "s_nop 0",
              "v_permlane32_swap_b32 v52, v56", "v_permlane32_swap_b32 v58, v62", "v_permlane32_swap_b32 v54, v53", "v_permlane32_swap_b32 v60, v59", "s_nop 0",
              "v_add_f32 v52, v52, v56", "v_add_f32 v58, v58, v62", "v_add_f32 v54, v54, v53", "v_add_f32 v60, v60, v59", "s_nop 1",
              "v_permlane16_swap_b32 v52, v54", "v_permlane16_swap_b32 v58, v60", "s_nop 1",
              "v_add_f32 v10, v52, v54", "v_add_f32 v11, v58, v60", f"ds_write_b64 v28, v[10:11] offset:{ST}"]
        k = 0; rd = []; mf = []
        for j in (1, 2, 3):
            for qb in range(2):
                for kp in range(2):
                    t = 188 + 4 * k; k += 1; o = 128 + 64 * qb + 8 * kp
                    rd.append(f"ds_read_b128 {R4('v', t)}, v{vR[j]} offset:{R2o + ((j-1)*4 + qb*2 + kp)*1024}")
                    mf += [f"{MF} {R4('a', o)}, {Alo}, {R4('v', t)}, {R4('a', o)}", f"{MF} {R4('a', o+4)}, {Ahi}, {R4('v', t)}, {R4('a', o+4)}"]
        gaps = [[] for _ in range(24)]
        for n in range(5):
            if exq:
                e = exq.pop(0); gaps[4 * n + 1] += e[:1]; gaps[4 * n + 2] += e[1:]
        gaps[21] += [f"buffer_load_dword v7, v6, {S(sWS)}, 0 offen sc1"]
        adr = [f"s_xor_b32 s{t3}, s{t3}, 512", f"v_mov_b32 v6, s{t3}",
               "v_mul_u32_u24 v26, 272, v4", "v_lshl_add_u32 v26, v5, 4, v26", f"v_add_u32 v26, s{sLds}, v26",
               "v_lshrrev_b32 v27, 3, v4", f"v_mul_u32_u24 v27, {32*272}, v27", "v_add_u32 v27, v27, v26",
               "v_and_b32 v15, 1, v5", "v_lshrrev_b32 v12, 1, v5", "v_lshl_add_u32 v15, v15, 1, v12",
               f"v_mul_u32_u24 v12, {8*272}, v15", "v_lshl_add_u32 v12, v4, 4, v12", f"v_add_u32 v12, s{sLds}, v12"]
        spread(gaps, adr, list(range(0, 20)))
        L += rd + weave(mf, gaps)
        L += ["@lg0", "s_barrier"] + self.stamp("B2")
        L += [f"ds_read_b64 {R2('v', 50+2*j)}, v{28+j} offset:{ST}" for j in (1, 2, 3)]
        L += ["@need v7", f"v_cmp_ne_u32 vcc, s{sTag}, v7", f"s_xor_b32 s{sXo}, s{sXo}, 32768", f"s_add_u32 s{t2}, s{sXo}, 4096",
              "s_cbranch_vccnz L_spin_xc", "L_back_xc:", f"v_and_b32 v7, 31, v{vLane}", "v_lshlrev_b32 v7, 3, v7"]
        self.stubs.append(self.spin("xc", 6, 7))
        L += [f"buffer_load_dwordx2 v[222:223], v7, {S(sWS)}, s{t2} offen sc1"]
        L += [f"buffer_load_dwordx4 {R4('v', 224+4*n)}, v0, {S(sWS)}, s{sXo} offen offset:{n*1024} sc1" for n in range(4)]
        L += ["v_pk_add_f32 v[10:11], v[10:11], v[52:53]", "v_pk_add_f32 v[54:55], v[54:55], v[56:57]", "s_nop 0", "v_pk_add_f32 v[10:11], v[10:11], v[54:55]",
              f"v_mov_b32 v52, {f2u(1/256):#x}", "s_nop 0", "v_pk_mul_f32 v[10:11], v[10:11], v[52:53] op_sel_hi:[1,0]", "s_nop 0",
              "v_fma_f32 v11, -v10, v10, v11", "v_max_f32 v11, 0, v11", f"v_add_f32 v11, {f2u(1e-5):#x}, v11", "v_rsq_f32 v52, v11", "s_nop 0",
              "v_mul_f32 v53, v10, v52", "v_sub_f32 v53, 0, v53",
              "v_mov_b32 v56, v52", "v_mov_b32 v57, v53", "s_nop 1",
              "v_permlane32_swap_b32 v52, v56", "v_permlane32_swap_b32 v53, v57", "s_nop 1",
              "v_mov_b32 v54, v52", "v_mov_b32 v55, v53", "v_mov_b32 v58, v56", "v_mov_b32 v59, v57", "s_nop 1",
              "v_permlane16_swap_b32 v52, v54", "v_permlane16_swap_b32 v53, v55", "v_permlane16_swap_b32 v56, v58", "v_permlane16_swap_b32 v57, v59", "s_nop 1"]
        gq = []
        for rb in (2, 0, 1):
            for eb in range(4):
                d = gacc(eb, rb); c = R2("v", 52 + 2 * rb)
                gq.append([f"v_pk_fma_f32 {R2('v', d+h)}, {R2('v', d+h)}, {c}, {c} op_sel:[0,0,1] op_sel_hi:[1,0,1]" for h in (0, 2)] +
                          [f"ds_write_b128 v{27 if rb == 2 else 26}, {R4('v', d)} offset:{GB + (0 if rb == 2 else (8 + 16*rb)*272) + eb*64}"])
        L += gq.pop(0) + gq.pop(0)
        def ex_u(k, d):
            if k == 2:
                rb = 0 if d >= 112 else 1; eb = (d - (112 if rb == 0 else 32)) // 4
                return [f"ds_write_b128 v26, {R4('v', d)} offset:{UB + rb*16*272 + eb*64}"]
            if gq: return gq.pop(0)
            return exq.pop(0) if exq else []
        L += gelu([uacc(eb, rb) for rb in range(2) for eb in range(4)], 0, ex_u)
        assert not gq
        L += self.stamp("gelu")
        NB = 8
        cread = lambda i: f"ds_read_b128 {R4('v', 188+4*(i%NB))}, v12 offset:{GB + (i+1)*272}"
        L += ["@lg0"] + [cread(i) for i in range(6)]
        L += ["v_lshrrev_b32 v26, 1, v15", "v_lshrrev_b32 v27, 3, v4", "v_lshl_add_u32 v26, v26, 1, v27", "v_lshlrev_b32 v26, 10, v26",
              "v_bfe_u32 v27, v4, 1, 1", "v_lshl_add_u32 v26, v27, 9, v26", "v_bfe_u32 v27, v4, 2, 1", "v_lshl_add_u32 v26, v27, 8, v26",
              "v_and_b32 v27, 1, v15", "v_lshl_add_u32 v26, v27, 7, v26", "v_and_b32 v27, 1, v4", "v_lshl_add_u32 v26, v27, 3, v26", f"v_add_u32 v26, s{sLds}, v26"]
        for i in range(22):
            if i + 6 < 22: L.append(cread(i + 6))
            elif i + 6 < 26: L += [f"ds_read_b128 {R4('v', 96+4*o)}, v12 offset:{UB + o*272}" for o in (2 * (i - 16), 2 * (i - 16) + 1)]
            if exq: L += exq.pop(0)
            for o in range(max(0, i - 14), min(7, i) + 1):
                tap = i - o
                for h in (0, 2):
                    a_, x_, w_ = R2("v", 64 + 4 * o + h), R2("v", 188 + 4 * (i % NB) + h), R2("v", 128 + 4 * tap + h)
                    L.append(f"v_pk_mul_f32 {a_}, {x_}, {w_}" if tap == 0 else f"v_pk_fma_f32 {a_}, {x_}, {w_}, {a_}")
        while exq: L += exq.pop(0)
        L += ["v_mov_b32 v10, v8", "v_mov_b32 v11, v9", "s_nop 1", "v_permlane32_swap_b32 v10, v8", "v_permlane32_swap_b32 v11, v9", "s_nop 1",
              "v_cmp_ne_u32 vcc, v9, v223", "s_cbranch_vccnz L_slowB", "L_back_slowB:", "v_add_f32 v8, v8, v222", "@need v[224:239]"]
        for qb in range(2):
            for kp in range(2):
                o = 128 + 64 * qb + 8 * kp; t = 224 + 4 * (qb * 2 + kp)
                L += [f"{MF} {R4('a', o)}, {Alo}, {R4('v', t)}, {R4('a', o)}", f"{MF} {R4('a', o+4)}, {Ahi}, {R4('v', t)}, {R4('a', o+4)}"]
        L += ["v_rcp_f32 v8, v8", "s_nop 7"]
        for o in range(8):
            L += [f"v_pk_mul_f32 {R2('v', 64+4*o+h)}, {R2('v', 64+4*o+h)}, {R2('v', 96+4*o+h)}" for h in (0, 2)]
            L += [f"v_cvt_pk_bf16_f32 v{64+4*o}, v{64+4*o}, v{65+4*o}", f"v_cvt_pk_bf16_f32 v{65+4*o}, v{66+4*o}, v{67+4*o}",
                  f"ds_write_b64 v26, {R2('v', 64+4*o)} offset:{ZB + o*16}"]
        for qb in range(2):
            for kp in range(2):
                o = 128 + 64 * qb + 8 * kp; t = 188 + 8 * (qb * 2 + kp)
                L += [f"v_accvgpr_read_b32 v{t+r}, a{o+r}" for r in range(8)]
                L += [f"v_cvt_pk_bf16_f32 v{t+r}, v{t+2*r}, v{t+2*r+1}" for r in range(4)]
                L.append(f"ds_write_b128 v{vR[0]}, {R4('v', t)} offset:{OB + (qb*2+kp)*1024}")
        L += ["v_mov_b32 v9, v8", "s_nop 1", "v_permlane16_swap_b32 v8, v9", "@lg0", "s_barrier"] + self.stamp("B3")
        fl = [(0, s, rb) for s in range(8) for rb in range(2)] + [(1, s, rb) for s in range(8) for rb in range(2)]
        def fread(n):
            m, s, rb = fl[n]
            return f"ds_read_b128 {R4('v', 32+4*(n%8))}, v{vR[s>>1]} offset:{(OB if m else ZB) + (rb*2 + (s&1))*1024}"
        L += [fread(n) for n in range(4)]
        mf = []; gaps = [[] for _ in range(128)]
        facc = lambda m, eb, rb: 64 + 32 * m + (rb * 4 + eb) * 4
        for n, (m, s, rb) in enumerate(fl):
            for eb in range(4):
                d = facc(m, eb, rb); w = R4("a", ureg(s * 4 + eb) if m else (s * 4 + eb) * 4)
                mf.append(f"{MF} {R4('v', d)}, {w}, {R4('v', 32+4*(n%8))}, {R4('v', d) if s else '0'}")
            g = 4 * n
            if n + 4 < 32: gaps[g].append(fread(n + 4))
            if n + 1 < 32:
                m2, s2, _ = fl[n + 1]
                wr = " ".join(R4("a", ureg(s2 * 4 + e) if m2 else (s2 * 4 + e) * 4) for e in range(4))
                gaps[g + 3].append(f"@need {R4('v', 32+4*((n+1)%8))} {wr}")
            if wq:
                ld, post = wq.pop(0); gaps[g + 2] += ld; gaps[g + 3] += post
        res = []
        for rb in range(2):
            for ep in range(2):
                for r in range(4):
                    x = 240 + 4 * (rb * 2 + ep) + r; d = facc(0, 2 * ep + (r >> 1), rb) + 2 * (r & 1)
                    res += [f"v_lshlrev_b32 v2, 16, v{x}", f"v_and_b32 v3, s{sMask}, v{x}", f"v_add_f32 v{d}, v{d}, v2", f"v_add_f32 v{d+1}, v{d+1}, v3"]
        spread(gaps, res, list(range(72, 126)))
        L += weave(mf, gaps) + ["s_nop 3"]
        for rb in range(2):
            for ep in range(2):
                t = 32 + 4 * (rb * 2 + ep)
                for e in range(2):
                    y, z = facc(0, 2 * ep + e, rb), facc(1, 2 * ep + e, rb)
                    L += [f"v_pk_fma_f32 {R2('v', y+h)}, {R2('v', z+h)}, v[8:9], {R2('v', y+h)} op_sel:[0,{rb},0] op_sel_hi:[1,{rb},1]" for h in (0, 2)]
                for e in range(2):
                    y = facc(0, 2 * ep + e, rb)
                    L += [f"v_cvt_pk_bf16_f32 v{t+2*e}, v{y}, v{y+1}", f"v_cvt_pk_bf16_f32 v{t+2*e+1}, v{y+2}, v{y+3}"]
                L.append(f"buffer_store_dwordx4 {R4('v', t)}, v{13+rb}, {S(sOut)}, 0 offen offset:{ep*64}")
        def bcast(src, d):
            return [f"v_mov_b32 v{d}, v{src}", f"v_mov_b32 v{d+2}, v{src}", "s_nop 1", f"v_permlane32_swap_b32 v{d}, v{d+2}", "s_nop 1",
                    f"v_mov_b32 v{d+1}, v{d}", f"v_mov_b32 v{d+3}, v{d+2}", "s_nop 1", f"v_permlane16_swap_b32 v{d}, v{d+1}", f"v_permlane16_swap_b32 v{d+2}, v{d+3}", "s_nop 1"]
        A = ["L_slowA:", f"s_cmp_lg_u32 s{sRedo}, 0", "s_cbranch_scc1 L_back_slowA", f"s_mov_b32 s{sRedo}, 1", "s_waitcnt vmcnt(0) lgkmcnt(0)",
             f"s_sub_u32 s{sWoff}, s{sWoff}, {3*4096}",
             "v_min3_f32 v26, v9, v11, v13", "v_min_f32 v26, v26, v15", "v_sub_f32 v27, v26, v9", "v_exp_f32 v27, v27", "v_mov_b32 v9, v26", "v_mul_f32 v8, v8, v27"] + bcast(27, 2)
        for q in range(4): A += self.scaleO(q, 2 + q)
        A += ["s_barrier", "s_branch L_redo"]
        B = ["L_slowB:", "s_waitcnt vmcnt(0)", "v_min_f32 v10, v9, v223", "v_sub_f32 v9, v10, v9", "v_sub_f32 v223, v10, v223", "v_exp_f32 v9, v9", "v_exp_f32 v223, v223", "s_nop 0",
             "v_mul_f32 v8, v8, v9", "v_mul_f32 v222, v222, v223", "v_mov_b32 v10, v9", "v_mov_b32 v11, v223", "s_nop 1",
             "v_permlane16_swap_b32 v9, v10", "v_permlane16_swap_b32 v223, v11", "s_nop 1"]
        for qb in range(2):
            f1, f2 = (9, 10)[qb], (223, 11)[qb]
            for r in range(16):
                o = 128 + 64 * qb + r
                B += [f"v_accvgpr_read_b32 v2, a{o}", f"v_mul_f32 v2, v{f1}, v2", f"v_accvgpr_write_b32 a{o}, v2"]
            for r in range(8):
                x = 224 + 8 * qb + r
                B += [f"v_lshlrev_b32 v2, 16, v{x}", f"v_and_b32 v3, s{sMask}, v{x}", f"v_mul_f32 v2, v{f2}, v2", f"v_mul_f32 v3, v{f2}, v3", f"v_cvt_pk_bf16_f32 v{x}, v2, v3"]
        B += ["s_nop 1", "s_branch L_back_slowB"]
        self.stubs += [A, B]
        return L

    def fold(self):
        L = ["L_fold:"]
        sF = sB; sA, sBm, sU = sX, sWq, sWk
        L += [f"s_sub_u32 s{sF}, s2, 252"]
        L += srd(sBm, f"s{pWm}", f"s{pWm+1}", 262144) + srd(sU, f"s{pWup}", f"s{pWup+1}", 262144)
        L += [f"v_lshrrev_b32 v12, 3, v{vLane}", f"v_and_b32 v13, 7, v{vLane}", "v_lshlrev_b32 v13, 4, v13",
              f"s_lshl_b32 s{t0}, s{sWave}, 6", f"v_add_u32 v12, s{t0}, v12", f"s_lshl_b32 s{t0}, s{sF}, 7", f"v_add_u32 v13, s{t0}, v13",
              "v_lshl_add_u32 v14, v12, 9, v13", "v_lshl_add_u32 v15, v12, 10, v13", f"s_lshl_b32 s{t1}, s{sWave}, 13"]
        for im in range(4):
            for p in range(8):
                so = (im * 131072 + p * 4096) if im < 2 else ((512 if im == 2 else 0) + p * 8192)
                L += [f"s_add_u32 m0, s{t1}, {im*32768 + p*1024}", f"s_mov_b32 s{t0}, {so}",
                      f"buffer_load_dwordx4 v{14 if im < 2 else 15}, {S(sBm if im < 2 else sU)}, s{t0} offen lds ;#im"]
        L += srd(sA, f"s{pDw}", f"s{pDw+1}", 7680)
        L += ["v_lshrrev_b32 v12, 4, v0", "v_lshlrev_b32 v12, 9, v12", "v_lshl_add_u32 v12, v8, 3, v12", f"s_lshl_b32 s{t0}, s{sF}, 7",
              f"buffer_load_dwordx2 v[16:17], v12, {S(sA)}, s{t0} offen",
              "v_lshlrev_b32 v20, 16, v16", f"v_and_b32 v21, s{sMask}, v16", "v_lshlrev_b32 v22, 16, v17", f"v_and_b32 v23, s{sMask}, v17",
              "v_lshlrev_b32 v12, 4, v0", "v_cmp_gt_u32 vcc, 240, v0", "v_mov_b32 v13, 0x40000000", "s_nop 0", "v_cndmask_b32 v12, v13, v12, vcc",
              f"s_mul_i32 s{t0}, s{sF}, 3840", f"s_add_u32 s{t0}, s{t0}, {DW_F}",
              f"buffer_store_dwordx4 v[20:23], v12, {S(sWS)}, s{t0} offen sc1"]
        L += ["v_bfe_u32 v16, v8, 2, 1", "v_bfe_u32 v18, v8, 3, 1", "v_lshl_add_u32 v16, v16, 1, v18", "v_lshlrev_b32 v16, 3, v16",
              "v_and_b32 v18, 3, v8", "v_add_u32 v16, v16, v18", "v_lshlrev_b32 v16, 9, v16", "v_lshl_add_u32 v16, v10, 4, v16",
              f"s_lshl_b32 s{t2}, s{sWave}, 15", f"v_add_u32 v24, s{t2}, v16",
              "v_lshlrev_b32 v16, 9, v8", "v_lshl_add_u32 v16, v10, 4, v16", f"v_add_u32 v25, s{t2}, v16"]
        def aload(ptr, c, base, natural):
            o = srd(sA, f"s{ptr}", f"s{ptr+1}", 131072)
            for db in range(4):
                o.append(f"s_mov_b32 s{t0}, {db*8192 if natural else (db>>1)*16384 + (db&1)*2048}")
                for ks in range(8):
                    o.append(f"buffer_load_dwordx4 {R4(c, base+(ks*4+db)*4)}, v{25 if natural else 24}, {S(sA)}, s{t0} offen offset:{ks*64}")
            return o
        L += aload(pWao, "v", 128, False) + aload(pWdn, "a", 0, False) + aload(pWv, "a", 128, True)
        L += ["v_lshrrev_b32 v16, 2, v8", "v_lshl_add_u32 v16, v10, 3, v16", "v_lshlrev_b32 v16, 7, v16", "v_and_b32 v18, 3, v8",
              "v_lshl_add_u32 v26, v18, 4, v16", "v_lshl_add_u32 v27, v18, 3, v16", "v_add_u32 v27, 65536, v27",
              f"s_lshl_b32 s{t0}, s{sWave}, 13", f"v_add_u32 v27, s{t0}, v27",
              f"v_lshlrev_b32 v28, 4, v{vLane}", "v_add_u32 v29, 131072, v28", f"v_add_u32 v30, s{t0}, v29",
              f"s_xor_b32 s{t1}, s{sWave}, s{sF}", f"s_lshl_b32 s{t1}, s{t1}, 13", f"s_lshl_b32 s{t2}, s{sF}, 15", f"s_add_u32 s{sXo}, s{t1}, s{t2}"]
        L += self.tagcalc()
        L += ["@vm im", "s_barrier"]
        def gemm(c, abase, bread):
            o = []
            for ks in range(8):
                for eb in range(4): o += bread(ks, eb, 32 + 4 * eb)
                for db in range(4):
                    for eb in range(4):
                        d = 64 + (db * 4 + eb) * 4
                        o.append(f"{MF} {R4('v', d)}, {R4(c, abase+(ks*4+db)*4)}, {R4('v', 32+4*eb)}, {R4('v', d) if ks else '0'}")
            o += ["s_nop 7"]
            return o
        def trP(im):
            return lambda ks, eb, t: [f"ds_read_b64_tr_b16 {R2('v', t+2*j)}, v26 offset:{im*32768 + ks*4096 + j*512 + (eb>>1)*64 + (eb&1)*8}" for j in range(2)]
        def pack(p, eb, t):
            o = []
            for hb in range(2):
                d = 64 + ((2 * p + hb) * 4 + eb) * 4
                o += [f"v_cvt_pk_bf16_f32 v{t+2*hb}, v{d}, v{d+1}", f"v_cvt_pk_bf16_f32 v{t+2*hb+1}, v{d+2}, v{d+3}"]
            return o
        def emit_out(base):
            o = []
            for p in range(2):
                o.append(f"s_add_u32 s{t0}, s{sXo}, {base + p*4096}")
                for eb in range(4):
                    t = 32 + 4 * (p * 4 + eb)
                    o += pack(p, eb, t) + [f"buffer_store_dwordx4 {R4('v', t)}, v28, {S(sWS)}, s{t0} offen offset:{eb*1024} sc1"]
            return o + ["s_waitcnt vmcnt(0)"]
        for im, base in ((0, WG_F), (1, WU_F)):
            for p in range(2):
                L.append(f"s_add_u32 s{t0}, s{sXo}, {base + p*4096}")
                for eb in range(4):
                    t = 64 + 4 * (im * 8 + p * 4 + eb)
                    L += [f"ds_read_b64_tr_b16 {R2('v', t+2*j)}, v27 offset:{im*32768 + p*4096 + j*512 + eb*32}" for j in range(2)]
                    L.append(f"buffer_store_dwordx4 {R4('v', t)}, v28, {S(sWS)}, s{t0} offen offset:{eb*1024} sc1")
        L += ["s_waitcnt vmcnt(0)"]
        L += gemm("v", 128, trP(0))
        for p in range(2):
            for eb in range(4):
                t = 32 + 4 * (p * 4 + eb)
                L += pack(p, eb, t) + [f"ds_write_b128 v30, {R4('v', t)} offset:{(p*4+eb)*1024}"]
        L += ["@lg0", "s_barrier"]
        L += gemm("a", 0, trP(1)) + emit_out(WD_F)
        L += gemm("a", 128, lambda ks, eb, t: [f"ds_read_b128 {R4('v', t)}, v29 offset:{(ks*4+eb)*1024}"]) + emit_out(WV_F)
        L += [f"s_lshl_b32 s{t0}, s{sF}, 2", f"s_add_u32 s{t0}, s{t0}, s{sWave}", f"s_lshl_b32 s{t1}, s{t0}, 7", f"s_add_u32 s{t1}, s{t1}, {FLAG_FOLD}",
              f"v_mov_b32 v7, s{sTag}", f"v_lshlrev_b32 v6, 26, v{vLane}", f"buffer_store_dword v7, v6, {S(sWS)}, s{t1} offen sc1",
              f"s_cmp_lg_u32 s{t0}, 0", "s_cbranch_scc1 L_end"]
        L += [f"v_lshlrev_b32 v12, 7, v{vLane}", f"v_min_u32 v13, {55*128}, v12", f"v_min_u32 v14, {15*128}, v12", f"s_mov_b32 s{sCnt}, 0", "L_ep:", "s_sleep 8"]
        for n in range(17):
            so = FLAG_FOLD if n == 16 else FLAG_XA + n * 8192
            L += [f"s_mov_b32 s{t0}, {so}", f"buffer_load_dword v{32+n}, v{14 if n == 16 else (13 if n & 7 == 7 else 12)}, {S(sWS)}, s{t0} offen sc1"]
        L += ["s_waitcnt vmcnt(0)"]
        for n in range(17): L.append(f"v_xor_b32 v{32+n}, s{sTag}, v{32+n}")
        for n in range(1, 17, 2): L.append(f"v_or3_b32 v32, v32, v{32+n}, v{33+n}")
        L += ["v_cmp_ne_u32 vcc, 0, v32", f"s_add_u32 s{sCnt}, s{sCnt}, 1", f"s_cmp_gt_u32 s{sCnt}, 0x8000", "s_cbranch_scc1 L_ep2", "s_cbranch_vccnz L_ep", "L_ep2:",
              f"buffer_store_dword v7, v6, {S(sWS)}, 0 offen sc1", "s_endpgm"]
        return L

    def dump_stamps(self):
        if not self.stamps: return []
        L = ["s_waitcnt vmcnt(0)"] + self.stamp("end") + ["s_waitcnt lgkmcnt(0)", f"s_lshl_b32 s{t0}, s2, 2", f"s_add_u32 s{t0}, s{t0}, s{sWave}",
             f"s_lshl_b32 s{t0}, s{t0}, 7", f"s_add_u32 s{t0}, s{t0}, {TS_OFF}", "v_mov_b32 v2, 0"]
        for n in range(self.nst): L += [f"v_mov_b32 v3, s{STAMPS[n]}", f"buffer_store_dword v3, v2, {S(sWS)}, s{t0} offen offset:{4*n}"]
        return L

    def build(self, path):
        st = WState()
        ent = resolve(self.entry(), st)
        fold = resolve(self.fold(), st.copy())
        c = self.front() + self.stamp("loop")
        for j in range(14): c += self.iteration(j, False, f"i{j}")
        c += [f"s_cmp_lg_u32 s{sN15}, 0", "s_cbranch_scc1 L_n15"]
        common = resolve(c, st)
        G, nh = self.G, self.nhead
        sb = st.copy()
        pa = resolve(self.iteration(14, False, "i14") + self.iteration(15, True, "i15"), st)
        self.G, self.nhead = G, nh
        pb = resolve(["L_n15:"] + self.iteration(14, True, "l14") + ["s_branch L_tail"], sb)
        tl = self.tail()
        ta = resolve(tl, st.copy()); tb = resolve(tl, sb.copy())
        assert ta == tb, "tail waits differ between paths"
        tailc = ["L_tail:"] + ta + self.dump_stamps() + ["s_endpgm"]
        rare = [self.rare(0), self.rare(1)]
        a = Asm()
        a(f'.amdgcn_target "amdgcn-amd-amdhsa--gfx950"\n.text\n.globl {KN}\n.p2align 8\n.type {KN},@function\n{KN}:')
        a.extend(ent + common + pa + tailc + pb)
        for s_ in self.stubs + rare: a.extend(s_)
        a.extend(fold)
        a("L_end:\ns_endpgm")
        a(f""".section .rodata,"a"
.p2align 6
.amdhsa_kernel {KN}
.amdhsa_next_free_vgpr 512
.amdhsa_next_free_sgpr 102
.amdhsa_accum_offset 256
.amdhsa_group_segment_fixed_size 0
.amdhsa_kernarg_size 96
.amdhsa_user_sgpr_count 2
.amdhsa_user_sgpr_kernarg_segment_ptr 1
.amdhsa_system_sgpr_workgroup_id_x 1
.end_amdhsa_kernel""")
        hdr = open("header.txt").read()
        if self.stamps: hdr += "; stamps " + " ".join(self.stnames) + "\n"
        open(path, "w").write(hdr + a.text())
        n = 0
        n += len(check_trace(ent + common + pa + tailc, "pathA"))
        n += len(check_trace(ent + common + pb + tailc, "pathB"))
        n += len(check_trace(ent + fold, "fold"))
        full = ent + common + pa + tailc
        stub = {s_[0][:-1]: s_ for s_ in self.stubs}
        for name in ("i0", "i1", "i2", "i15"):
            k = full.index(f"s_cbranch_vccnz L_stub_{name}"); e = full.index(f"L_back_{name}:")
            p = int(name[1:]) & 1
            n += len(check_trace(full[:k + 1] + stub[f"L_stub_{name}"] + rare[p] + full[e:e + 400], "rare" + name))
        k = full.index("s_cbranch_vccnz L_slowA")
        n += len(check_trace(full[:k + 1] + stub["L_slowA"] + full[full.index("L_redo:"):], "slowA"))
        k = full.index("s_cbranch_vccnz L_slowB")
        n += len(check_trace(full[:k + 1] + stub["L_slowB"] + full[k + 1:], "slowB"))
        print(path, "problems", n, "lines", len(a.lines))

if __name__ == "__main__":
    Gen().build("standalone__conformer_family_branchformer__speech.s")
    Gen(stamps=True).build("k_st.s")
    Gen(thi=2.0**6, tlo=2.0**-3).build("k_rare.s")
```

```python
import re

TRANS = ("v_exp_f32", "v_log_f32", "v_rcp_f32", "v_rsq_f32", "v_sqrt_f32", "v_sin_f32", "v_cos_f32", "v_rcp_iflag_f32")

def regs_of(tok):
    tok = tok.strip()
    t = tok
    if t.startswith("-"): t = t[1:]
    if t.startswith("abs(") : t = t[4:-1]
    if t.startswith("|"): t = t.strip("|")
    m = re.fullmatch(r"([vas])(\d+)", t)
    if m: return {(m.group(1), int(m.group(2)))}
    m = re.fullmatch(r"([vas])\[(\d+):(\d+)\]", t)
    if m: return {(m.group(1), i) for i in range(int(m.group(2)), int(m.group(3)) + 1)}
    if t in ("vcc", "vcc_lo", "vcc_hi"): return {("x", "vcc")}
    if t in ("exec", "exec_lo", "exec_hi"): return {("x", "exec")}
    if t == "m0": return {("x", "m0")}
    if t == "scc": return {("x", "scc")}
    return set()

def split_ops(s):
    out, depth, cur = [], 0, ""
    for ch in s:
        if ch in "[(": depth += 1
        if ch in "])": depth -= 1
        if ch == "," and depth == 0:
            out.append(cur.strip()); cur = ""
        else:
            cur += ch
    if cur.strip(): out.append(cur.strip())
    return out

class Ins:
    __slots__ = ("text", "op", "ops", "mods", "kind", "w", "r", "srcc", "srcab", "passes", "ws", "lds_dma", "wide_store", "dpp")
    def __init__(self, text):
        self.text = text
        t = text.split(";")[0].strip()
        parts = t.split(None, 1)
        self.op = parts[0]
        rest = parts[1] if len(parts) > 1 else ""
        ops = split_ops(rest)
        mods = []
        if ops:
            last = ops[-1].split()
            if len(last) > 1 and not self.op.startswith("s_waitcnt"):
                ops[-1] = last[0]; mods = last[1:]
        self.ops, self.mods = ops, mods
        self.w, self.r = set(), set()
        self.srcc, self.srcab = set(), set()
        self.passes = 0; self.ws = 1; self.lds_dma = False; self.wide_store = set(); self.dpp = False
        op = self.op
        op = re.sub(r"_(e32|e64|dpp|sdwa)$", "", op)
        R = lambda i: regs_of(ops[i]) if i < len(ops) else set()
        if op.startswith("v_mfma"):
            self.kind = "mfma"
            self.w = R(0); self.srcab = R(1) | R(2); self.srcc = R(3); self.r = self.srcab | self.srcc
            self.passes = 8 if "32x32" in op else 4
        elif op.startswith("v_"):
            self.kind = "trans" if op in TRANS else "valu"
            self.dpp = any(m.startswith(("quad_perm", "row_", "wave_", "row_bcast")) for m in mods) or self.op.endswith("_dpp")
            if op.startswith("v_cmp"):
                self.w = R(0); self.r = R(1) | R(2)
                if op.startswith("v_cmpx"): self.w |= {("x", "exec")}
            elif op in ("v_readfirstlane_b32", "v_readlane_b32"):
                self.w = R(0); self.r = R(1) | R(2)
            elif op.startswith("v_permlane") and "swap" in op:
                self.w = R(0) | R(1); self.r = R(0) | R(1)
            elif op in ("v_add_co_u32", "v_sub_co_u32", "v_addc_co_u32", "v_subb_co_u32", "v_mad_u64_u32"):
                self.w = R(0) | R(1); self.r = set().union(*[R(i) for i in range(2, len(ops))])
            elif op == "v_nop":
                pass
            else:
                self.w = R(0); self.r = set().union(*[R(i) for i in range(1, len(ops))]) if len(ops) > 1 else set()
                if op.startswith(("v_fmac", "v_pk_fmac", "v_dot2c", "v_writelane")) or self.dpp: self.r |= R(0)
                if op == "v_cndmask_b32" and len(ops) == 3: self.r |= {("x", "vcc")}
        elif op.startswith("ds_"):
            self.kind = "ds"
            if op.startswith(("ds_read", "ds_bpermute", "ds_permute", "ds_swizzle")):
                self.w = R(0); self.r = set().union(*[R(i) for i in range(1, len(ops))])
            else:
                self.r = set().union(*[R(i) for i in range(0, len(ops))])
        elif op.startswith(("buffer_", "global_")):
            self.kind = "vmem"
            if op in ("buffer_inv", "buffer_wbl2"):
                pass
            elif "lds" in mods or "_lds_" in op:
                self.lds_dma = True
                self.r = set().union(*[R(i) for i in range(0, len(ops))]) | {("x", "m0")}
            elif "_load_" in op:
                self.w = R(0); self.r = set().union(*[R(i) for i in range(1, len(ops))])
            elif "_store_" in op:
                self.r = set().union(*[R(i) for i in range(0, len(ops))])
                if op.endswith(("x3", "x4")):
                    self.wide_store = R(0) if op.startswith("buffer_") else R(1)
            elif "_atomic_" in op:
                self.r = set().union(*[R(i) for i in range(0, len(ops))])
                if "sc0" in mods:
                    self.w = R(0)
                    if op.startswith("global_"): self.r = set().union(*[R(i) for i in range(1, len(ops))])
            else:
                raise ValueError("vmem? " + text)
        elif op.startswith(("s_load", "s_buffer_load", "s_memtime", "s_memrealtime", "s_atomic")):
            self.kind = "smem"
            self.w = R(0); self.r = set().union(*[R(i) for i in range(1, len(ops))]) if len(ops) > 1 else set()
        elif op == "s_waitcnt":
            self.kind = "wait"
        elif op == "s_nop":
            self.kind = "nop"; self.ws = int(ops[0], 0) + 1
        elif op in ("s_barrier", "s_endpgm", "s_setprio", "s_sleep"):
            self.kind = "misc"
        elif op.startswith(("s_branch", "s_cbranch")):
            self.kind = "branch"
            if "vcc" in op: self.r = {("x", "vcc")}
            if "exec" in op: self.r = {("x", "exec")}
        elif op.startswith("s_"):
            self.kind = "salu"
            if op.startswith(("s_cmp", "s_bitcmp")):
                self.r = R(0) | R(1)
            elif op.startswith("s_getreg") or op.startswith("s_getpc"):
                self.w = R(0)
            elif op.startswith("s_setpc"):
                self.r = R(0)
            else:
                self.w = R(0); self.r = set().union(*[R(i) for i in range(1, len(ops))]) if len(ops) > 1 else set()
                if "saveexec" in op: self.w |= {("x", "exec")}; self.r |= {("x", "exec")}
                if op in ("s_addk_i32", "s_mulk_i32"): self.r |= R(0)
        else:
            raise ValueError("unknown instr: " + text)

def parse_wait(ins):
    vm = lg = None
    t = ins.text.split(";")[0]
    m = re.search(r"vmcnt\((\d+)\)", t); vm = int(m.group(1)) if m else None
    m = re.search(r"lgkmcnt\((\d+)\)", t); lg = int(m.group(1)) if m else None
    return vm, lg

_seen = set()
def check_trace(lines, name="trace", verbose=True):
    ins = []
    for l in lines:
        t = l.split(";")[0].strip()
        if not t or t.endswith(":") or t.startswith("."): continue
        ins.append(Ins(l.strip()))
    probs = []
    pos = [0]
    for i in ins: pos.append(pos[-1] + i.ws)
    def dist(a, b):
        return pos[b] - pos[a + 1]
    MAXD = 24
    T_ab = {2: 5, 4: 8, 8: 12, 16: 20}
    T_cov = {2: 4, 4: 6, 8: 10, 16: 18}
    T_war = {2: 1, 4: 3, 8: 7, 16: 15}
    isv = lambda s: {x for x in s if x[0] in "va"}
    iss = lambda s: {x for x in s if x[0] == "s" or x == ("x", "vcc")}
    for b, B in enumerate(ins):
        if B.kind in ("wait", "nop", "misc"): continue
        a = b - 1
        while a >= 0 and dist(a, b) < MAXD:
            A = ins[a]; d = dist(a, b); need = 0; why = ""
            def req(n, w):
                nonlocal need, why
                if n > need: need, why = n, w
            if A.kind in ("valu", "trans"):
                if B.kind == "mfma" and isv(A.w) & B.r: req(2, "valu->mfma")
                if A.op.startswith("v_dot") and isv(A.w) & (B.r | B.w):
                    same_c = B.op == A.op and not (A.w & (regs_of(B.ops[1]) | regs_of(B.ops[2])))
                    if not same_c: req(3, "dot->other")
                if A.kind == "trans" and B.kind == "valu" and A.w & B.r: req(1, "trans->valu")
                if B.kind in ("valu", "trans") and iss(A.w) & B.r:
                    req(4 if B.op.startswith(("v_readlane", "v_writelane")) and iss(A.w) & regs_of(B.ops[2]) else 2, "valu sgpr->valu")
                if B.kind == "vmem" and iss(A.w) & B.r: req(5, "valu sgpr->vmem")
                if B.op.startswith(("v_readfirstlane", "v_readlane")) and isv(A.w) & B.r: req(1, "valu->readlane")
                if B.op.startswith("v_permlane") and isv(A.w) & B.r: req(2, "valu->permlane")
                if B.dpp and isv(A.w) & B.r: req(2, "valu->dpp")
                if ("x", "exec") in A.w:
                    if B.kind == "mfma" or B.op.startswith(("v_readlane", "v_readfirstlane", "v_writelane", "v_permlane")): req(4, "cmpx")
                    if B.dpp: req(5, "cmpx->dpp")
                if any(m.startswith(("op_sel", "dst_sel")) for m in A.mods) and not A.op.startswith("v_pk") and B.kind in ("valu", "trans") and A.w & (B.r | B.w): req(1, "opsel")
            if A.kind == "mfma":
                p = A.passes
                if B.kind == "mfma":
                    if A.w & B.srcab: req(T_ab[p], "mfma D->mfma AB")
                    if A.w & B.srcc:
                        if not (A.w == B.srcc and A.passes == B.passes): req(T_cov[p], "mfma D->mfma C overlap")
                    elif A.w & B.w: req(T_cov[p], "mfma D->mfma D WAW (conservative)") if A.w != B.w else None
                elif B.kind in ("valu", "trans"):
                    if A.w & (B.r | B.w): req(T_ab[p], "mfma D->valu")
                    if A.srcc & B.w: req(T_war[p], "mfma C WAR valu")
                elif B.kind in ("ds", "vmem"):
                    if A.w & (B.r | B.w): req(T_ab[p], "mfma D->mem")
                    if A.srcc & B.w: req(T_war[p], "mfma C WAR load")
            if A.kind == "salu" and ("x", "m0") in A.w and B.lds_dma: req(1, "m0->dma")
            if A.wide_store and (A.wide_store & B.w): req(2 if B.kind in ("valu", "trans") else 1, "store WAR")
            if need > d:
                probs.append(f"{name}: HAZARD {why}: need {need} have {d}: [{a}] {A.text}  ->  [{b}] {B.text}")
            a -= 1
    vmq, lgq = [], []
    for i, I in enumerate(ins):
        if I.kind == "wait":
            vm, lg = parse_wait(I)
            if vm is not None:
                while len(vmq) > vm: vmq.pop(0)
            if lg is not None:
                if any(k == "smem" for _, _, k in lgq):
                    if lg == 0: lgq.clear()
                else:
                    while len(lgq) > lg: lgq.pop(0)
            continue
        touched = I.r | I.w
        for q in (vmq, lgq):
            for (j, w, k) in q:
                if w & touched:
                    if (w & I.r) or not ((I.kind == "ds" and k == "ds") or (I.kind == "vmem" and k == "vmem") or (I.kind == "smem" and k == "smem")):
                        probs.append(f"{name}: UNWAITED [{j}] {ins[j].text}  used by [{i}] {I.text}")
        if I.kind == "vmem":
            vmq.append((i, I.w, "vmem"))
            if len(vmq) > 63: probs.append(f"{name}: vmcnt overflow at [{i}] {I.text}")
        elif I.kind == "ds":
            lgq.append((i, I.w, "ds"))
        elif I.kind == "smem":
            lgq.append((i, I.w, "smem"))
    probs = [p for p in probs if re.sub(r"^\S+ |\[\d+\]", "", p) not in _seen]
    for p in probs: _seen.add(re.sub(r"^\S+ |\[\d+\]", "", p))
    if verbose:
        for p in probs[:40]: print(p)
        if len(probs) > 40: print("...", len(probs) - 40, "more")
    return probs

class Asm:
    def __init__(self):
        self.lines = []
    def __call__(self, s=""):
        for l in s.split("\n"):
            l = l.strip()
            if l: self.lines.append(l)
        return self
    def extend(self, ls):
        for l in ls: self(l)
    def text(self):
        out = []
        for l in self.lines:
            if l.endswith(":") or l.startswith("."): out.append(l)
            else: out.append("    " + l)
        return "\n".join(out) + "\n"

def vr(b, n=1, c="v"):
    return f"{c}{b}" if n == 1 else f"{c}[{b}:{b+n-1}]"
def ar(b, n=1): return vr(b, n, "a")
def sr(b, n=1): return vr(b, n, "s")

def auto_lgkm(lines_cyc, group=1):
    out, q = [], []
    for l in lines_cyc:
        t = l.split(";")[0].strip()
        if not t or t.endswith(":") or t.startswith("."):
            out.append(l); continue
        I = Ins(l)
        if I.kind == "wait":
            vm, lg = parse_wait(I)
            if lg is not None:
                while len(q) > lg: q.pop(0)
            out.append(l); continue
        touched = I.r | (I.w if I.kind != "ds" else set())
        need = -1
        for j, w in enumerate(q):
            if w & touched: need = j
        if need >= 0:
            n = len(q) - need - 1
            n = min(n, 15)
            out.append(f"s_waitcnt lgkmcnt({n})")
            while len(q) > n: q.pop(0)
        if I.kind == "ds": q.append(I.w)
        out.append(l)
    return out


class WState:
    def __init__(self):
        self.vm = []
        self.lg = []
    def copy(self):
        s = WState(); s.vm = list(self.vm); s.lg = list(self.lg); return s

def resolve(lines, st):
    out = []
    def emit_wait(vm, lg):
        if vm is None and lg is None: return
        if out and out[-1].startswith("s_waitcnt"):
            pv, pl = parse_wait(Ins(out[-1]))
            vm = pv if vm is None else (vm if pv is None else min(vm, pv))
            lg = pl if lg is None else (lg if pl is None else min(lg, pl))
            out.pop()
        t = "s_waitcnt"
        if vm is not None: t += f" vmcnt({vm})"
        if lg is not None: t += f" lgkmcnt({lg})"
        out.append(t)
    def need(regs, skip_ds=False, skip_vm=False):
        vm = lg = None
        if not skip_vm:
            k = -1
            for j, (w, _) in enumerate(st.vm):
                if w & regs: k = j
            if k >= 0:
                vm = min(len(st.vm) - k - 1, 63); del st.vm[:len(st.vm) - vm]
        if not skip_ds:
            k = -1
            for j, (w, _) in enumerate(st.lg):
                if w & regs: k = j
            if k >= 0:
                if any(kind == "smem" for _, kind in st.lg): lg = 0
                else: lg = min(len(st.lg) - k - 1, 15)
                del st.lg[:len(st.lg) - lg]
        emit_wait(vm, lg)
    for l in lines:
        t = l.split(";")[0].strip()
        if not t or t.endswith(":") or t.startswith("."):
            out.append(l); continue
        if t.startswith("@need"):
            regs = set()
            for tok in t.split()[1:]: regs |= regs_of(tok)
            need(regs); continue
        if t.startswith("@vm"):
            tag = t.split()[1]; k = -1
            for j, (_, tg) in enumerate(st.vm):
                if tg == tag: k = j
            if k >= 0:
                vm = min(len(st.vm) - k - 1, 63); del st.vm[:len(st.vm) - vm]; emit_wait(vm, None)
            continue
        if t.startswith("@lg0"):
            if st.lg: st.lg.clear(); emit_wait(None, 0)
            continue
        I = Ins(l)
        if I.kind == "wait":
            vm, lg = parse_wait(I)
            if vm is not None and len(st.vm) > vm: del st.vm[:len(st.vm) - vm]
            if lg is not None:
                if any(kind == "smem" for _, kind in st.lg):
                    if lg == 0: st.lg.clear()
                elif len(st.lg) > lg: del st.lg[:len(st.lg) - lg]
            emit_wait(vm, lg); continue
        need(I.r)
        need(I.w, skip_ds=(I.kind in ("ds", "smem")), skip_vm=(I.kind == "vmem"))
        if I.kind == "vmem":
            if len(st.vm) >= 62:
                del st.vm[:len(st.vm) - 48]; emit_wait(48, None)
            m = re.search(r";\s*#(\S+)", l)
            st.vm.append((I.w, m.group(1) if m else None))
        elif I.kind == "ds": st.lg.append((I.w, "ds"))
        elif I.kind == "smem": st.lg.append((I.w, "smem"))
        out.append(l)
    return out

def vcost(x):
    op = x.split()[0]
    if ";!" in x: return 2
    if op.startswith("@") or op.endswith(":"): return 0
    if op.startswith("s_cbranch") or op == "s_nop": return 1
    if op.startswith("s_"): return 0
    if op.startswith(("buffer_", "global_", "ds_write")): return 2
    if op in TRANS or op.startswith("v_permlane"): return 2
    return 1

def grank(x):
    op = x.split()[0]
    if ";!" in x: return 2
    if op.startswith("@") or op == "s_waitcnt": return 0
    if op.startswith("s_cbranch") or op.endswith(":") or op == "s_barrier": return 4
    if op == "s_nop": return 3
    if op.startswith("s_"): return 1
    if op.startswith(("ds_", "buffer_", "global_")): return 2
    return 3

def spread(gaps, stream, glist, force=False):
    cap = [2 - sum(vcost(x) for x in gaps[g]) for g in glist]
    hasv = [any(grank(x) == 3 for x in gaps[g]) for g in glist]
    need = sum(vcost(x) for x in stream)
    tot = sum(max(c, 0) for c in cap)
    best = None
    for pc in range(min(100, int(100 * need / max(tot, 1))), 101):
        pace = pc / 100
        k = 0; done = 0; cum = 0.0; out = [[] for _ in glist]
        for n, g in enumerate(glist):
            cum += max(cap[n], 0) * pace; c = cap[n]; hv = hasv[n]
            while k < len(stream) and vcost(stream[k]) <= c and (done < cum or pc == 100):
                r = grank(stream[k])
                if r == 2 and hv: break
                if r == 3: hv = True
                out[n].append(stream[k]); c -= vcost(stream[k]); done += vcost(stream[k]); k += 1
        best = (out, k)
        if k == len(stream): break
    out, k = best
    if k < len(stream) and not force: raise Exception(f"no fit: {len(stream)-k} left")
    for n, g in enumerate(glist): gaps[g] += out[n]
    return stream[k:]

def weave(mf, gaps):
    out = []
    for i in range(len(gaps)):
        if mf[i]: out.append(mf[i])
        for x in sorted(gaps[i], key=grank): out += x.replace(" ;!", "").split("\n")
    return out
```

```python
import sys, struct
from asmlib import *

KN = "standalone__conformer_family_branchformer__speech_kernel"
MF = "v_mfma_f32_16x16x32_bf16"
FLAG_XA = 0x1000; FLAG_FOLD = 0x9000; FLAG_XCH = 0x24000
XA = 1 << 20; WG_F = 6 << 20; WU_F = WG_F + 0x20000; WD_F = WG_F + 0x40000; WV_F = WG_F + 0x60000; DW_F = WG_F + 0x80000
XCH = 8 << 20; WS_USED = 16 << 20; TS_OFF = 100 << 20
REG = 40960
def f2u(x): return struct.unpack("<I", struct.pack("<f", x))[0]
LOG2E = 1.4426950408889634
ALPHA = (LOG2E / 16) ** 0.5

pX, pWq, pWk, pWv, pWao, pWup, pDw, pWdn, pWm, pOut, pDbg, pWs = range(4, 28, 2)
sX, sWq, sWk, sWS, sXA, sOut = 28, 32, 36, 40, 44, 48
sWave, sB, sHalf, sTown, sTag, sLds = 52, 53, 54, 55, 56, 57
sG = [58, 60]; sThi, sTlo, sN15, sTile, sT0, sMask, s4096, s16k = 62, 63, 64, 65, 66, 67, 68, 69
t0, t1, t2, t3 = 70, 71, 72, 73
sP0, sP1, sFirst, sRedo, sRet, sCnt, sWoff, sXo = 74, 75, 76, 77, 78, 80, 81, 82
STAMPS = list(range(84, 102, 2)) + [4, 6, 8, 10, 20, 22, 24, 26]
vLane, vK, vV, vD, vPoll, vT0, vL, vTS, vC, vF, vS = 1, 2, 3, [4, 5], 6, 7, 8, 12, 16, 32, [64, 96]
NF = 8
def Oreg(q, n): return ("v", 128 + 64 * q + 4 * n) if q < 2 else ("a", 128 + 64 * (q - 2) + 4 * n)
def R4(c, b): return f"{c}[{b}:{b+3}]"
def R2(c, b): return f"{c}[{b}:{b+1}]"
def srd(d, lo, hi, n): return [f"s_mov_b32 s{d}, {lo}", f"s_mov_b32 s{d+1}, {hi}", f"s_mov_b32 s{d+2}, {n}", f"s_mov_b32 s{d+3}, 0x20000"]
S = lambda d: f"s[{d}:{d+3}]"

class Gen:
    def __init__(self, stamps=False, D=4, order=3, thi=2.0**60, tlo=2.0**-60, pollstep=4, npre=6, nln=8, wqevery=9, wqskip=20, npub=0, nb1=(3, 2), nst6=2, flagstep=4, cyc=False, tlb=False, pfirst=True, pfq=True, touch=False, warm=False, xflag=28, pollissue=1, foldpf=True):
        self.foldpf = foldpf
        self.pollissue = pollissue
        self.xflag = xflag
        self.warm = warm
        self.pfirst, self.pfq, self.touch = pfirst, pfq, touch
        self.tlb = tlb; self.wqevery = wqevery; self.wqskip, self.npub, self.nb1, self.nst6 = wqskip, npub, nb1, nst6
        self.npre, self.nln, self.flagstep, self.cyc = npre, nln, flagstep, cyc
        self.stamps, self.D, self.order, self.thi, self.tlo, self.pollstep = stamps, D, order, thi, tlo, pollstep
        self.nst = 0; self.stnames = []
        self.stubs = []
    def stamp(self, name):
        if not self.stamps or (name not in self.stamps and name not in ("start", "end")): return []
        if name in self.stnames: r = STAMPS[self.stnames.index(name)]
        else:
            r = STAMPS[self.nst]; self.nst += 1; self.stnames.append(name)
        return [f"s_mem{'' if self.cyc else 'real'}time s[{r}:{r+1}]"]

    def entry(self):
        L = []
        L += [f"s_cmp_ge_u32 s2, 256", "s_cbranch_scc1 L_end"]
        L += self.stamp("start")
        L += ["s_load_dwordx16 s[4:19], s[0:1], 0", "s_load_dwordx8 s[20:27], s[0:1], 64",
              "s_getpc_b64 s[70:71]", "L_pc:", "s_bfe_u32 s72, s2, 0x30003", "s_lshl_b32 s72, s72, 13", "v_lshrrev_b32 v19, 2, v0", "v_lshlrev_b32 v19, 7, v19",
              "v_add_u32 v17, s72, v19", "v_min_u32 v17, L_end-L_pc, v17", "global_load_dword v128, v17, s[70:71]",
              "v_lshrrev_b32 v2, 6, v0", f"v_and_b32 v{vLane}, 63, v0", f"v_readfirstlane_b32 s{sWave}, v2",
              f"v_and_b32 v8, 15, v{vLane}",
              f"v_lshrrev_b32 v9, 4, v{vLane}",
              f"v_bfe_u32 v10, v{vLane}, 4, 1", f"v_lshrrev_b32 v11, 5, v{vLane}",
              "v_lshl_add_u32 v10, v10, 1, v11",
              f"s_mul_i32 s{sLds}, s{sWave}, {REG}",
              f"s_mov_b32 s{sMask}, 0xffff0000", f"s_movk_i32 s{s4096}, 4096", f"s_movk_i32 s{s16k}, 16384",
              f"s_and_b32 s{sHalf}, s2, 1", f"s_bfe_u32 s{sB}, s2, 0x10001",
              f"s_lshr_b32 s{t0}, s2, 2", f"s_lshl_b32 s{t0}, s{t0}, 1", f"s_add_u32 s{sTown}, s{t0}, s{sHalf}",
              f"s_lshr_b32 s{t1}, s{sWave}, 1", f"s_xor_b32 s{t1}, s{t1}, 1", f"s_xor_b32 s{sTile}, s{sTown}, s{t1}",
              f"s_and_b32 s{t1}, s{sWave}, 1", f"s_lshl_b32 s{t2}, s{sTile}, 1", f"s_add_u32 s{t2}, s{t2}, s{t1}", f"s_lshl_b32 s{t2}, s{t2}, 13",
              f"v_xor_b32 v16, v{vLane}, v11", "v_lshlrev_b32 v13, 4, v16", f"v_add_u32 v144, s{t2}, v13"] + [f"v_xor_b32 v{144+p}, {p*32}, v144" for p in range(1, 8)] + [
              f"v_lshrrev_b32 v16, 3, v{vLane}", f"v_and_b32 v17, 7, v{vLane}", "v_and_b32 v18, 2, v16", "v_xor_b32 v17, v17, v18",
              "v_lshlrev_b32 v16, 9, v16", f"v_lshl_add_u32 v14, v17, 4, v16", f"s_lshl_b32 s{t3}, s{sWave}, 7",
              f"v_add_u32 v14, s{t3}, v14", f"v_xor_b32 v15, 64, v14",
              "s_waitcnt lgkmcnt(0)"] + self.stamp("karg") + [
              f"s_load_dword s{sTag}, s[{pWs}:{pWs+1}], 0"]
        if self.tlb:
            for ptr, off in ((pWq, 0), (pWk, 0), (pOut, 0), (pOut, 2 << 20)):
                L += [f"s_mov_b32 s{t0}, {off}", f"s_load_dword s83, s[{ptr}:{ptr+1}], s{t0}"]
            for k in range(1, 8): L += [f"s_mov_b32 s{t0}, {k << 21}", f"s_load_dword s83, s[{pWs}:{pWs+1}], s{t0}"]
        L += srd(sWS, f"s{pWs}", f"s{pWs+1}", 0x10000000 if self.stamps else WS_USED)
        L += ["s_cmp_ge_u32 s2, 252", "s_cbranch_scc1 L_fold"]
        return L
    def tagcalc(self):
        return [f"@need s{sTag}", f"s_mul_i32 s{sTag}, s{sTag}, 1664525", f"s_add_u32 s{sTag}, s{sTag}, 1013904223"]

    def dma(self, G, NT=16):
        if G >= NT * 16: return [], [], []
        slot = (G % 40) * 1024; h = (G >> 3) & 1; jj = (G >> 2) & 1
        pre = [f"s_add_u32 m0, s{sLds}, {slot + 4096}"] if G % 8 == 0 else []
        ld = [f"global_load_lds_dwordx4 v{vD[jj]}, s[{sG[h]}:{sG[h]+1}] offset:{(G%8)*1024 - 4096} sc1 ;#p{G}"]
        post = [f"s_add_u32 s{sG[h]}, s{sG[h]}, 16384", f"s_addc_u32 s{sG[h]+1}, s{sG[h]+1}, 0"] if G % 8 == 7 else []
        return pre, ld, post
    def front(self):
        L = []
        vXa, vRa, vRb, vA0, vA1, vSt, vWa, vWb, vWk, vAk = 12, 12, 13, 14, 15, 26, 27, 28, 25, 24
        vTr = [2, 3, 4, 5]; vAbs = [8, 9, 10, 11]
        DM = 12
        L += [f"s_mul_i32 s{t0}, s{sB}, 2048000", f"s_add_u32 s{sX}, s{pX}, s{t0}", f"s_addc_u32 s{sX+1}, s{pX+1}, 0",
              f"s_mov_b32 s{sX+2}, 2048000", f"s_mov_b32 s{sX+3}, 0x20000"]
        for i in range(8):
            if i % 4 == 0: L += [f"s_add_u32 m0, s{sLds}, {32768 + i*1024}", "s_nop 0"]
            L.append(f"buffer_load_dwordx4 v{144+i}, {S(sX)}, {'s%d' % s4096 if i >= 4 else '0'} offen offset:{(i&3)*1024} lds ;#x")
        L += self.stamp("xiss")
        L += srd(sWq, f"s{pWq}", f"s{pWq+1}", 131072) + srd(sWk, f"s{pWk}", f"s{pWk+1}", 131072)
        L += ["s_bfe_u32 s73, s2, 0x40003", "s_lshl_b32 s73, s73, 13",
              f"buffer_load_dword v130, v19, {S(sWq)}, s73 offen", f"buffer_load_dword v129, v19, {S(sWk)}, s73 offen"]
        vQ4 = [137, 132, 133, 134]
        L += [f"v_mov_b32 v137, v{vA0}", f"v_add_u32 v132, 3072, v{vA0}", f"v_add_u32 v133, 6144, v{vA1}", f"v_add_u32 v134, 9216, v{vA1}"]
        def wq2(p):
            pre = [f"s_add_u32 m0, s{sLds}, {p*1024}", f"s_mov_b32 s{sWoff}, {p*4096}"] if p % 4 == 0 else []
            return pre, [f"buffer_load_dwordx4 v{vQ4[p & 3]}, {S(sWq)}, s{sWoff} offen offset:{(p&3)*1024} lds ;#wq{p}"]
        def wq(p): return wq2(p)[0] + wq2(p)[1]
        NPRE = self.npre
        for p in range(4): L += wq(p)
        L += self.stamp("wq4")
        L += self.stamp("pf")
        if self.warm:
            L += [f"s_lshl_b32 s{t0}, s2, 2", f"s_add_u32 s{t0}, s{t0}, s{sWave}", f"s_lshr_b32 s{t1}, s{t0}, 7", f"s_mov_b64 s[{sRet}:{sRet+1}], s[{pWao}:{pWao+1}]"]
            for k, ptr in ((1, pWdn), (2, pWv), (4, pWm), (6, pWup)):
                L += [f"s_cmp_ge_u32 s{t1}, {k}", f"s_cselect_b64 s[{sRet}:{sRet+1}], s[{ptr}:{ptr+1}], s[{sRet}:{sRet+1}]"]
            L += [f"s_cmp_ge_u32 s{t1}, 4", f"s_cselect_b32 s{t1}, 128, 0", f"s_or_b32 s{t1}, s{t1}, 127", f"s_and_b32 s{t0}, s{t0}, s{t1}", f"s_lshl_b32 s{t0}, s{t0}, 10",
                  f"v_lshrrev_b32 v16, 3, v{vLane}", "v_lshlrev_b32 v16, 7, v16", f"v_add_u32 v16, s{t0}, v16", f"global_load_dword v131, v16, s[{sRet}:{sRet+1}]"]
        alu = []
        alu += [f"s_mul_i32 s{t0}, s{sB}, 2048000", f"s_add_u32 s{sOut}, s{pOut}, s{t0}", f"s_addc_u32 s{sOut+1}, s{pOut+1}, 0",
              f"s_mov_b32 s{sOut+2}, 2048000", f"s_mov_b32 s{sOut+3}, 0x20000",
              f"s_add_u32 s{t0}, s{t0}, {XA}", f"s_add_u32 s{sXA}, s{pWs}, s{t0}", f"s_addc_u32 s{sXA+1}, s{pWs+1}, 0",
              f"s_mov_b32 s{sXA+2}, 2048000", f"s_mov_b32 s{sXA+3}, 0x20000", "|",
              f"s_mul_i32 s{sT0}, s{sHalf}, 63", f"s_lshl_b32 s{t0}, s{sWave}, 4", f"s_add_u32 s{sT0}, s{sT0}, s{t0}",
              f"s_add_u32 s{t0}, s{sWave}, s{sHalf}", f"s_cmp_ge_u32 s{t0}, 3", f"s_cselect_b32 s{sN15}, 1, 0",
              f"s_cmp_eq_u32 s{t0}, 4", f"s_cselect_b32 s{t0}, 1, 0", f"s_sub_u32 s{sT0}, s{sT0}, s{t0}", "|",
              f"s_lshl_b32 s{t0}, s{sT0}, 14", f"s_lshr_b32 s{t1}, s{sWave}, 1", f"s_lshl_b32 s{t1}, s{t1}, 13",
              f"s_add_u32 s{t2}, s{t0}, s{t1}", f"s_add_u32 s{sG[0]}, s{sXA}, s{t2}", f"s_addc_u32 s{sG[0]+1}, s{sXA+1}, 0",
              f"s_xor_b32 s{t2}, s{t2}, 8192", f"s_add_u32 s{sG[1]}, s{sXA}, s{t2}", f"s_addc_u32 s{sG[1]+1}, s{sXA+1}, 0", "|",
              f"s_mov_b32 s{sThi}, {f2u(self.thi):#x}", f"s_mov_b32 s{sTlo}, {f2u(self.tlo):#x}", f"s_mov_b32 s{sRedo}, 0",
              ] + [x for r in range(4) for x in (f"s_mov_b32 s{DM+2*r}, {(0x100001 << r):#x}", f"s_mov_b32 s{DM+2*r+1}, {(0x10000100 << r):#x}")]
        alu += [f"v_lshlrev_b32 v16, 3, v11", "v_xor_b32 v16, v8, v16", "v_lshlrev_b32 v16, 4, v16", "v_lshl_add_u32 v29, v10, 9, v16", "|",
              f"s_and_b32 s{t1}, s{sWave}, 1", f"s_lshl_b32 s{t1}, s{t1}, 8", f"s_lshl_b32 s{t2}, s{sTile}, 14", f"s_add_u32 s{t1}, s{t1}, s{t2}",
              f"s_lshl_b32 s{t2}, s{sHalf}, 13", f"s_add_u32 s{t1}, s{t1}, s{t2}", f"v_add_u32 v{vSt}, s{t1}, v29", "|",
              f"s_lshl_b32 s{t2}, s{sHalf}, 12", f"s_add_u32 s{t2}, s{t2}, s{sLds}", f"s_add_u32 s{t2}, s{t2}, 32768",
              f"v_lshlrev_b32 v30, 4, v{vLane}", f"v_add_u32 v{vWa}, s{t2}, v30", f"v_xor_b32 v{vWb}, 4096, v{vWa}", "|",
              "v_xor_b32 v16, v10, v8", "v_lshlrev_b32 v16, 4, v16", "v_lshl_add_u32 v16, v8, 9, v16", f"s_lshl_b32 s{t2}, s{sHalf}, 8", f"s_add_u32 s{t2}, s{t2}, s{sLds}",
              f"v_add_u32 v152, s{t2}, v16"] + [f"v_xor_b32 v{152+p}, {p*64}, v152" for p in range(1, 8)] + ["|"]
        alu += ["v_lshrrev_b32 v16, 3, v8", "v_and_b32 v18, 2, v10", "v_or_b32 v16, v16, v18", "v_lshlrev_b32 v16, 5, v16",
              "v_bfe_u32 v18, v8, 1, 1", "v_lshl_add_u32 v16, v18, 4, v16", "v_and_b32 v18, 1, v8", "v_lshl_add_u32 v16, v18, 3, v16", "|",
              "v_lshrrev_b32 v18, 2, v8", "v_lshl_add_u32 v16, v18, 7, v16", "v_lshl_add_u32 v16, v10, 10, v16",
              f"v_add_u32 v{vTr[0]}, s{sLds}, v16"] + [f"v_xor_b32 v{vTr[e]}, {e*32}, v{vTr[0]}" for e in (1, 2, 3)] + ["|"]
        alu += [f"v_add_u32 v31, s{sLds}, v30",
              "v_lshrrev_b32 v16, 1, v8", "v_xor_b32 v16, v16, v11", "v_lshlrev_b32 v16, 4, v16", "v_lshl_add_u32 v16, v8, 7, v16",
              "v_and_b32 v18, 1, v9", "v_lshl_add_u32 v16, v18, 3, v16", f"v_add_u32 v160, s{sLds}, v16"] + [f"v_xor_b32 v{160+p}, {p*32}, v160" for p in range(1, 4)] + ["|",
              f"v_bfe_u32 v16, v{vLane}, 3, 2", "v_lshl_add_u32 v16, v11, 4, v16", "v_lshlrev_b32 v16, 9, v16",
              f"v_and_b32 v18, 7, v{vLane}", "v_xor_b32 v18, v18, v9", "v_lshl_add_u32 v16, v18, 4, v16",
              f"s_lshl_b32 s{t2}, s{sWave}, 15", f"v_add_u32 v135, s{t2}, v16", "v_xor_b32 v136, 64, v135", "v_add_u32 v136, 3072, v136",
              f"s_lshl_b32 s{sP0}, s{sWave}, 7", "|",
              f"v_lshrrev_b32 v16, 2, v{vLane}", f"s_sub_u32 s{t2}, 15, s{sN15}", f"v_min_u32 v16, s{t2}, v16",
              f"s_lshl_b32 s{t2}, s{sB}, 7", f"s_add_u32 s{t2}, s{t2}, s{sT0}", f"v_add_u32 v16, s{t2}, v16", "|",
              f"v_and_b32 v18, 3, v{vLane}", "v_lshl_add_u32 v16, v16, 5, v18", "v_lshlrev_b32 v16, 2, v16", f"v_add_u32 v{vPoll}, {FLAG_XA}, v16",
              "|",
              f"s_lshl_b32 s{t2}, s{sB}, 7", f"s_add_u32 s{t2}, s{t2}, s{sTile}", f"s_lshl_b32 s{t2}, s{t2}, 5",
              f"s_and_b32 s{t1}, s{sWave}, 1", f"s_lshl_b32 s{t1}, s{t1}, 1", f"s_add_u32 s{t2}, s{t2}, s{t1}", f"s_add_u32 s{t2}, s{t2}, s{sHalf}",
              f"s_lshl_b32 s{t2}, s{t2}, 2", f"s_add_u32 s{sXo}, s{t2}, {FLAG_XA}", "|"]
        alu += [f"v_add_u32 v{vAbs[j]}, {j*REG}, v30" for j in range(4)] + [f"v_mov_b32 v{20+r}, 0x3f803f80" for r in range(4)]
        p = 4
        for x in alu:
            if x == "|":
                if p < NPRE: L += wq(p) + self.stamp(f"wq{p+1}"); p += 1
            else: L.append(x)
        while p < NPRE: L += wq(p); p += 1
        L += self.stamp("pretag") + self.tagcalc() + [f"v_mov_b32 v7, s{sTag}"] + self.stamp("tag")
        L += ["s_mov_b32 vcc_lo, 0xf0000f", "s_mov_b32 vcc_hi, 0xf0000f00", "@vm x"] + self.stamp("x")
        L += [f"ds_read_b128 {R4('v', 32+4*i)}, v{152+i} offset:32768" for i in range(8)]
        ln = []
        for i in range(8):
            X = R4("v", 32 + 4 * i)
            un = []
            for r in range(4):
                x = 32 + 4 * i + r; d = 64 + 8 * i + 2 * r
                un += [f"v_lshlrev_b32 v{d}, 16, v{x}", f"v_and_b32 v{d+1}, s{sMask}, v{x}"]
            a_ = f"{MF} v[140:143], {X}, {X}, {'0' if i == 0 else 'v[140:143]'}"; b_ = f"{MF} v[16:19], v[20:23], {X}, {'0' if i == 0 else 'v[16:19]'}"
            ln += [a_, b_] + un if i == 7 else [a_] + un[:4] + [b_] + un[4:]
        ln += [f"v_cndmask_b32 v18, v141, v140, s[{DM}:{DM+1}]", f"v_cndmask_b32 v18, v18, v142, s[{DM+4}:{DM+5}]", f"v_cndmask_b32 v18, v18, v143, s[{DM+6}:{DM+7}]",
               f"v_cndmask_b32 v18, 0, v18, vcc", f"v_mul_f32 v16, {f2u(-1/256):#x}, v16", "v_mov_b32 v19, v18", f"v_mul_f32 v17, {f2u(16.0):#x}, v16",
               "v_mul_f32 v17, v17, v17", "v_permlane32_swap_b32 v19, v18", "v_add_f32 v18, v18, v19", "v_mov_b32 v19, v18", f"v_mov_b32 v20, {f2u(1e-5 / ALPHA**2):#x}", "s_nop 0",
               "v_permlane16_swap_b32 v19, v18", "v_add_f32 v18, v18, v19", "v_sub_f32 v18, v18, v17", "v_max_f32 v18, 0, v18",
               f"v_fmamk_f32 v18, v18, {f2u(1/256 / ALPHA**2):#x}, v20", "v_rsq_f32 v18, v18", "s_nop 0", "v_mul_f32 v19, v16, v18"]
        pub = []
        for i in range(8):
            for r in range(4):
                d = 64 + 8 * i + 2 * r
                pub.append(f"v_pk_fma_f32 {R2('v', d)}, {R2('v', d)}, v[18:19], v[18:19] op_sel:[0,0,1] op_sel_hi:[1,0,1]")
            for r in range(4):
                d = 64 + 8 * i + 2 * r
                pub.append(f"v_cvt_pk_bf16_f32 v{32+4*i+r}, v{d}, v{d+1}")
            if i < 4: pub.append(f"buffer_store_dwordx4 {R4('v', 32+4*i)}, v{vSt}, {S(sXA)}, {'s%d' % s4096 if i >= 2 else '0'} offen offset:{(i&1)*2048} sc1 ;#xast")
            pub.append(f"ds_write_b128 v{vWa if i < 4 else vWb}, {R4('v', 32+4*i)} offset:{(i&3)*1024}")
        rest = list(range(NPRE, 32)); out = []; k = -self.wqskip; n1 = self.nln
        for x in ln:
            out.append(x); k += 1
            if k >= self.wqevery and n1 and x.startswith("v_") and not x.startswith(("v_mfma", "v_rsq")): out += wq(rest.pop(0)); k = 0; n1 -= 1
        out += self.stamp("ln")
        n2 = self.npub
        for x in pub:
            out.append(x)
            if x.startswith("ds_write") and f"v{vWb}" in x and n2: out += wq(rest.pop(0)); n2 -= 1
        L += out + self.stamp("pubx")
        dq = [(0,) + wq2(p) for p in rest]
        for n in range(8):
            for k in range(4):
                dq.append((min(n, 6), [f"s_add_u32 m0, s{sLds}, {n*4096}", f"s_xor_b32 s{sWoff}, s{sP0}, {(n>>1)*128 + (n&1)*16384}"] if k == 0 else [],
                           [f"buffer_load_dwordx4 v{135 + (k&1)}, {S(sWk)}, s{sWoff} offen offset:{k*1024} lds ;#wk{n*4+k}"]))
        Breg = lambda s, qb: 128 + (s * 4 + qb) * 4
        Areg = lambda s, e: 16 * (s % 3) + 4 * e
        vR = [12, 13, 14, 15]
        def gemm(aread, avm, bread, stage, hook, tag, dmaf):
            M = lambda s, e, qb: f"{MF} {R4('v', 64+(e*4+qb)*4)}, {R4('a', Areg(s, e))}, {R4('a', Breg(s, qb))}, {R4('v', 64+(e*4+qb)*4) if s else '0'}"
            mf = [M(s, e, qb) for s in range(6) for e in range(4) for qb in range(4)]
            mf += [M(s, 2 * p + hb, qb) for p in range(2) for qb in range(4) for hb in range(2) for s in (6, 7)]
            gaps = [[] for _ in range(128)]
            bq = [x for s in range(1, 8) for x in bread(s)]
            for s in range(8):
                g = 16 * s
                if s < 6:
                    for k, (sn, pos) in enumerate(((s + 1, (0, 4, 5, 7)),) + (((7, (8, 9, 11, 12)),) if s == 5 else ())):
                        r = aread(sn); gaps[g + pos[0]].append(avm(sn))
                        for n, x in enumerate(r): gaps[g + pos[n]] += x
                    nd = f"@need a[{Areg(s+1,0)}:{Areg(s+1,0)+15}] a[{Breg(s+1,0)}:{Breg(s+1,0)+15}]"
                    if s == 5: nd += f" a[{Areg(7,0)}:{Areg(7,0)+15}]"
                    gaps[g + 15].append(nd)
                for pos in (1, 3, 8):
                    if bq: gaps[g + pos] += bq[:2]; bq = bq[2:]
                if s == 5: gaps[g + 3] += ["@need a[128:255]", "s_barrier"]
                for n in range(4 if s < 6 else (self.nst6 if s == 6 else 0)):
                    pre, ld, post = dmaf(s)
                    gaps[g + 4 * n + 1] += pre; gaps[g + 4 * n + 2] += ld; gaps[g + 4 * n + 3] += post
                gaps[g + 13] += self.stamp(f"{tag}s{s}")
                hook(s, g, gaps)
            left = []
            gaps[99].append("s_nop 0"); gaps[100].append("s_nop 1")
            for k in range(8):
                p, qb = k >> 2, k & 3; t = 32 + 4 * k; g = 96 + 4 * k + 5
                for gg, ins in ((g, cv2(2 * p, qb, t)), (g + 2, cv2(2 * p + 1, qb, t + 2)), (g + 3, [f"ds_write_b128 v{stage}, {R4('v', t)} offset:{32768 + (qb*2+p)*1024}"])):
                    if gg < 128: gaps[gg] += ins
                    else: left += ins
            return weave(mf, gaps) + ["s_nop 2"] + left
        def cv2(e, qb, t):
            d = 64 + (e * 4 + qb) * 4
            return [f"v_cvt_pk_bf16_f32 v{t}, v{d}, v{d+1}", f"v_cvt_pk_bf16_f32 v{t+1}, v{d+2}, v{d+3}"]
        def dq_next(s):
            if dq and dq[0][0] <= s: _, pre, ld = dq.pop(0); return pre, ld, []
            return [], [], []
        poll = [f"buffer_load_dword v7, v{vPoll}, {S(sWS)}, 0 offen sc1"]
        def g1a(s): return [[f"ds_read_b64_tr_b16 {R2('a', Areg(s, eb)+2*j)}, v{vTr[eb]} offset:{s*4096 + j*512}" for j in range(2)] for eb in range(4)]
        def g1b(s): return [f"ds_read_b128 {R4('a', Breg(s, qb))}, v{vAbs[qb]} offset:{32768 + s*1024}" for qb in range(4)]
        def dq_now(n, s):
            o = []
            for _ in range(n):
                pre, ld, _p = dq_next(s); o += pre + ld
            return o
        L += ["@vm wq3"] + [x for y in g1a(0) for x in y] + dq_now(self.nb1[0], 0) + ["@lg0", "s_barrier"] + self.stamp("b1") + g1b(0) + dq_now(self.nb1[1], 0)
        for j in range(4): L += [f"s_xor_b32 s{t1}, s{sWave}, {j}", f"s_mul_i32 s{t1}, s{t1}, {REG}", f"v_add_u32 v{vR[j]}, s{t1}, v30"]
        def hook1(s, g, gaps):
            if s == self.flagstep: gaps[g + 12] += ["@vm xast"] + self.flagstore(7, sXo)
        L += gemm(g1a, lambda s: f"@vm wq{4*s+3}", g1b, 31, hook1, "g1", dq_next)
        L += self.stamp("g1")
        def g2a(ks): return [[f"ds_read_b64 {R2('a', Areg(ks, db)+2*j)}, v{160 + 2*(ks&1) + j} offset:{(ks>>1)*8192 + db*2048}" for j in range(2)] for db in range(4)]
        def g2b(ks): return [f"ds_read_b128 {R4('a', Breg(ks, qb))}, v{vR[ks>>1]} offset:{32768 + qb*2048 + (ks&1)*1024}" for qb in range(4)]
        L += ["@vm wk7"] + [x for y in g2a(0) for x in y]
        for n in range(2):
            pre, ld, _ = dq_next(7); L += pre + ld
        L += ["@lg0", "s_barrier"] + self.stamp("b2") + g2b(0)
        for n in range(2):
            pre, ld, _ = dq_next(7); L += pre + ld
        adr = [f"v_add_u32 v{vK}, s{sLds}, v29",
              f"v_lshrrev_b32 v16, 2, v{vLane}", f"v_bfe_u32 v17, v{vLane}, 1, 1", "v_lshlrev_b32 v18, 3, v17", "v_xor_b32 v16, v16, v18",
              "v_lshlrev_b32 v16, 4, v16", "v_lshl_add_u32 v16, v17, 9, v16", f"v_and_b32 v17, 1, v{vLane}", "v_lshl_add_u32 v16, v17, 3, v16",
              f"v_add_u32 v{vV}, s{sLds}, v16", f"v_add_u32 v{vD[0]}, s{t2}, v30", f"v_add_u32 v{vD[1]}, s{t3}, v30"]
        L += [f"s_and_b32 s{t3}, s{sWave}, 1", f"s_lshl_b32 s{t3}, s{t3}, 12", f"s_add_u32 s{t2}, s{t3}, 4096", f"s_xor_b32 s{t3}, s{t3}, 4096"]
        zero = [f"v_mov_b32 v{r}, 0" for r in list(range(vC, vC + 16)) + list(range(vL, vL + 4))]
        ps = self.pollstep; self.G = 0
        def hook2(s, g, gaps):
            if s == self.pollissue: gaps[g + 12] += poll
            if s == ps - 1:
                gaps[g + 13] += ["@need v7", f"v_cmp_ne_u32 vcc, s{sTag}, v7"]
                gaps[g + 15] += ["s_cbranch_vccnz L_spin_xa", "L_back_xa:"]
                self.stubs.append(self.spin("xa", vPoll, 7))
            if s == 1: spread(gaps, adr, list(range(0, 32)))
            if s == 4: spread(gaps, zero, list(range(32, 80)))
        def dma2(s):
            if dq: return dq_next(7)
            if s >= ps:
                assert 2 * (self.G >> 3) + 1 <= s
                self.G += 1; return self.dma(self.G - 1)
            return [], [], []
        L += gemm(g2a, lambda s: f"@vm wk{8*(s>>1)+7}", g2b, vR[0], hook2, "g2", dma2)
        L += self.stamp("g2")
        G = self.G
        D = self.D
        for n in range(2):
            pre, ld, post = self.dma(G); G += 1
            L += pre + (["s_nop 0"] if pre else []) + ld + post
        L += self.stamp("qpw") + ["@vm p3"] + self.stamp("p3") + [x for n in range(4) for x in self.kread(0, n, n)]
        L += ["@lg0", "s_barrier"] + self.stamp("b3")
        def qread(s): return [f"ds_read_b128 {R4('a', 32*qb+4*s)}, v{vR[s>>1]} offset:{32768 + (qb*2+(s&1))*1024}" for qb in range(4)]
        L += qread(0) + qread(1)
        for n in range(2):
            pre, ld, post = self.dma(G); G += 1
            L += pre + (["s_nop 0"] if pre else []) + ld + post
        mf = []; gaps = [[] for _ in range(64)]
        for n in range(16): mf += self.qk(n, n % NF, 0)
        mf = self.reorder(mf, self.order & 1)
        for st in range(16):
            g = 4 * st; i = st + D
            t, n = (0, i) if i < 16 else (1, i - 16)
            if n % 2 == 0: gaps[g].append(f"@vm p{t*16+n+1}")
            gaps[g] += self.kread(t, n, i % NF)
            if st % 2 == 0 and st // 2 + 2 < 8:
                qq = qread(st // 2 + 2); gaps[g + 1] += qq[:2]; gaps[g + 5] += qq[2:]
            if G < 32:
                pre, ld, post = self.dma(G); G += 1
                gaps[g + 1] += pre; gaps[g + 2] += ld; gaps[g + 3] += post
            if st % 2 == 1:
                nx = st + 1
                need = f"@need v[{vF+4*(nx%NF)}:{vF+4*(nx%NF)+7}]"
                if nx < 16: need += "".join(f" {R4('a', 32*qb+4*(nx//2))}" for qb in range(4))
                gaps[g + 3].append(need)
        gaps[62].append("s_barrier")
        L += weave(mf, gaps)
        print('   ring pieces issued before loop', G)
        assert G >= 24
        self.G = G; self.nhead = 0
        return L

    def wload(self, c, reg, n, va=0):
        ld = [f"buffer_load_dwordx4 {R4(c, reg)}, v{va}, {S(sWS)}, s{sWoff} offen offset:{(n&3)*1024} sc1"]
        post = [f"s_add_u32 s{sWoff}, s{sWoff}, {4096 if n & 31 != 31 else 4096 + 0x20000 - 0x8000}"] if n & 3 == 3 else []
        return ld, post

    def flagstore(self, vdata, soff):
        return [f"s_mov_b64 exec, 1 ;!\nbuffer_store_dword v{vdata}, off, {S(sWS)}, s{soff} sc1\ns_mov_b64 exec, -1"]

    def spin(self, name, vaddr, vdst):
        return [f"L_spin_{name}:", f"s_mov_b32 s{sCnt}, 0", f"L_spinl_{name}:", "s_sleep 1",
                f"buffer_load_dword v{vdst}, v{vaddr}, {S(sWS)}, 0 offen sc1", f"s_add_u32 s{sCnt}, s{sCnt}, 1",
                f"s_cmp_gt_u32 s{sCnt}, 0x10000", "s_waitcnt vmcnt(0)", f"s_cbranch_scc1 L_back_{name}",
                f"v_cmp_ne_u32 vcc, s{sTag}, v{vdst}", f"s_cbranch_vccnz L_spinl_{name}", f"s_branch L_back_{name}"]

    def F(self, f): return R4("v", vF + 4 * f)
    def kread(self, t, n, f):
        s, kb = n >> 1, n & 1
        return [f"ds_read_b128 {self.F(f)}, v{vK} offset:{((t*16 + 2*s) % 40)*1024 + kb*256}"]
    def vread(self, t, n, f):
        return [f"ds_read_b64_tr_b16 {R2('v', vF+4*f+2*j)}, v{vV} offset:{((t*16+n) % 40)*1024 + j*256}" for j in range(2)]
    def qk(self, n, f, buf, czero=False):
        s, kb = n >> 1, n & 1; o = []
        for q in range(4):
            d = vS[buf] + 8 * q + 4 * kb
            C = R4("v", d) if s else ("0" if czero else R4("v", vC + 4 * q))
            o.append(f"{MF} {R4('v', d)}, {self.F(f)}, {R4('a', 32*q+4*s)}, {C}")
        return o
    def pv(self, n, f, buf, zero):
        o = []
        for q in range(4):
            oc, d = Oreg(q, n)
            o.append(f"{MF} {R4(oc, d)}, {self.F(f)}, {R4('v', vS[buf]+8*q)}, {'0' if zero else R4(oc, d)}")
        return o
    def reorder(self, mf, on):
        if not on: return mf
        out = []
        for i in range(0, len(mf), 8):
            for n in range(4): out += [mf[i + n], mf[i + 4 + n]]
        return out
    def softmax(self, buf):
        seq = []; pend = []
        for q in range(4):
            b = vS[buf] + 8 * q; ts = vTS + q
            for r in range(8):
                seq.append(f"v_exp_f32 v{b+r}, v{b+r}")
                seq += pend; pend = []
                if r == 1: pend.append(f"v_add_f32 v{ts}, v{b}, v{b+1}")
                if r > 1: pend.append(f"v_add_f32 v{ts}, v{ts}, v{b+r}")
                if r % 2 == 1: pend.append(f"v_cvt_pk_bf16_f32 v{b+r//2}, v{b+r-1}, v{b+r}")
        seq.append(f"v_max3_f32 v{vT0}, v{vTS}, v{vTS+1}, v{vTS+2}")
        seq += pend
        seq += [f"v_add_f32 v{vT0}, v{vT0}, v{vTS+3}", f"v_cmp_nge_f32 vcc, s{sThi}, v{vT0}"]
        return seq
    NHEAD = 28
    def iteration(self, j, last, name):
        D = self.D; p = j & 1
        gaps = [[] for _ in range(128)]
        a = []; b = []
        for i in range(16): a += self.qk(i, i % NF, 1 - p); b += self.pv(i, i % NF, p, j == 0)
        mf = ([None] * 64 if last else self.reorder(a, self.order & 1)) + self.reorder(b, self.order & 2)
        G = self.G
        for st in range(32):
            i = st + D; g = 4 * st
            if i < 16: t, n, isk = j + 1, i, True
            elif i < 32: t, n, isk = j, i - 16, False
            else: t, n, isk = j + 2, i - 32, True
            if isk:
                if not last and t < 16:
                    if n % 2 == 0 and (n == 0 or n >= 8 or j == 0): gaps[max(g - 1, 0)].append(f"@vm p{t*16 + (7 if n == 0 else n + 1)}")
                    gaps[g] += self.kread(t, n, i % NF)
            else: gaps[g] += self.vread(t, n, i % NF)
            if (st >= 16 or (j == 0 and (st % 2 == 0 or 40 - G > (16 - st) // 2) and G < 40)) and not last:
                pre, ld, post = self.dma(G); G += 1
                gaps[g + 1] += pre; gaps[g + 2] += ld; gaps[g + 3] += post
            if st % 2 == 1 and (st >= 15 or not last) and not (last and st == 31):
                nx = (st + 1) % NF
                gaps[g + 3].append(f"@need v[{vF+4*nx}:{vF+4*nx+7}]")
        self.G = G
        gaps[63].append(f"s_cbranch_vccnz L_stub_{name}")
        if j == 0:
            gaps[63] += [f"L_mid_{name}:"]
        ladd = [f"v_add_f32 v{vL+q}, v{vL+q}, v{vTS+q}" for q in range(4)]
        gaps[65] += ladd[:2]; gaps[67] += ladd[2:]
        self.stubs.append([f"L_stub_{name}:", f"s_mov_b32 s{sP0}, {((j*16) % 40)*1024}", f"s_mov_b32 s{sP1}, {((j*16+8) % 40)*1024}",
                           f"s_mov_b32 s{sFirst}, {int(j == 0)}", f"s_call_b64 s[{sRet}:{sRet+1}], L_rare{p}", f"s_branch L_back_{name}"])
        if j == 11:
            ex = [f"v_and_b32 v{vPoll}, 15, v{vLane}", f"s_lshl_b32 s{t0}, s{sB}, 7", f"v_lshrrev_b32 v0, 2, v{vPoll}", f"s_sub_u32 s{t1}, s{sTown}, 1",
                  f"v_add_u32 v0, s{t1}, v0", "v_max_i32 v0, 0, v0", "v_min_u32 v0, 124, v0", f"v_add_u32 v0, s{t0}, v0",
                  f"s_add_u32 s{t1}, s{sWave}, {(FLAG_FOLD - FLAG_XA) // 128}", f"v_cmp_gt_u32 s[{t2}:{t3}], 12, v{vPoll}", f"v_and_b32 v{vPoll}, 3, v{vPoll}",
                  f"v_mov_b32 v{vT0}, s{t1}", f"v_cndmask_b32 v0, v{vT0}, v0, s[{t2}:{t3}]", f"v_lshl_add_u32 v0, v0, 5, v{vPoll}", "v_lshlrev_b32 v0, 2, v0",
                  f"v_add_u32 v{vPoll}, {FLAG_XA}, v0"]
            k = 0
            for x in ex:
                gaps[69 + 2 * k].append(x)
                if not x.startswith("s_"): k += 1
        if j == 12:
            gaps[2].append(f"buffer_load_dword v0, v{vPoll}, {S(sWS)}, 0 offen sc1")
            gaps[69] += ["@need v0", f"v_cmp_ne_u32 vcc, s{sTag}, v0"]
            gaps[73] += ["s_cbranch_vccnz L_spin_tl", "L_back_tl:"]
            self.stubs.append(self.spin("tl", vPoll, 0))
            ex = [f"s_lshl_b32 s{t0}, s{sTown}, 14", f"v_subrev_u32 v0, s{sLds}, v{vK}", f"s_lshl_b32 s{t1}, s{sWave}, 12", f"v_xor_b32 v{vPoll}, 128, v0",
                  f"s_add_u32 s{t0}, s{t0}, s{t1}", f"v_add_u32 v0, s{t0}, v0", f"s_sub_u32 s{t0}, s{t0}, {16384 - 256}", f"v_add_u32 v{vPoll}, s{t0}, v{vPoll}",
                  f"v_bfe_u32 v{vT0}, v{vLane}, 3, 1", f"v_mul_u32_u24 v{vT0}, {32768 - 256}, v{vT0}", f"v_add_u32 v{vPoll}, v{vPoll}, v{vT0}"]
            k = 0
            for x in ex:
                gaps[77 + 2 * k].append(x)
                if not x.startswith("s_"): k += 1
        if j == 13:
            for n in range(6):
                rb, ss = n >> 1, n & 1; g = 4 * (24 + n)
                off = ss * 2048 + (256 if rb == 1 else 0)
                gaps[g + 1].append(f"s_add_u32 m0, s{sLds}, {16384 + n*1024 - off}")
                gaps[g + 2].append(f"buffer_load_dwordx4 v{vPoll if rb == 2 else 0}, {S(sXA)}, 0 offen offset:{off} sc1 lds ;#x48")
            gaps[119] += [f"s_lshr_b32 s{t0}, s2, 3", f"s_lshl_b32 s{t0}, s{t0}, 2"]
            gaps[120] += [f"s_add_u32 s{t0}, s{t0}, s{sWave}", f"s_and_b32 s{t0}, s{t0}, 63"]
            gaps[121] += [f"s_lshl_b32 s{t0}, s{t0}, 13", f"s_add_u32 s{t0}, s{t0}, {WG_F}", f"v_lshlrev_b32 v0, 7, v{vLane}"]
            gaps[123] += [f"buffer_load_dword v{vPoll}, v0, {S(sWS)}, s{t0} offen ;#x48"]
        if j == 14:
            gaps[0] = [f"s_lshl_b32 s{sWoff}, s{sWave}, 15", f"s_add_u32 s{sWoff}, s{sWoff}, {WG_F}", f"v_lshlrev_b32 v0, 4, v{vLane}"] + gaps[0]
        if j == 14 and not last:
            for n in range(16):
                g = 64 + 4 * n
                if n % 4 == 0: gaps[g + 1].append(f"s_add_u32 m0, s{sLds}, {24576 + n*1024}")
                gaps[g + 2].append(f"buffer_load_dwordx4 v0, {S(sWS)}, s{sWoff} offen offset:{(n&3)*1024} sc1 lds ;#gw{n}")
                if n % 4 == 3: gaps[g + 3].append(f"s_add_u32 s{sWoff}, s{sWoff}, 4096")
        if last:
            gaps[64].append("@vm x48")
            if j == 15:
                gaps[1].append(f"v_add_u32 v{vD[0]}, s{sLds}, v0")
                for n in range(0, 16, 2):
                    gaps[69 + 4 * n] += [f"@vm gw{n+1}"] + [f"ds_read_b128 {R4('a', 4*m)}, v{vD[0]} offset:{24576 + m*1024}" for m in (n, n + 1)]
            for n in range(16 if j == 15 else 0, 32):
                ld, post = self.wload("a", 4 * n, n)
                g = 4 * n + 2 if j == 15 else 64 + 2 * n
                gaps[g] += ld; gaps[g + 1] += post
            gaps[127].append("@need a[0:63]")
        sm = self.softmax(p)
        cur = sm[self.nhead:]
        left = spread(gaps, cur, list(range(5 if j == 0 else 0, 61)), force=(j == 0))
        if left: gaps[62] += left
        if not last:
            nx = self.softmax(1 - p)
            if j == 14:
                left = spread(gaps, nx[:-1], list(range(69, 128)), force=True)
                self.nhead = len(nx) - 1 - len(left)
            else:
                left = spread(gaps, nx[:self.NHEAD], list(range(69, 128)), force=True); self.nhead = self.NHEAD - len(left)
        out = weave(mf, gaps)
        if j == 0:
            k = out.index(f"L_mid_{name}:")
            out[k:k + 1] = [f"v_min3_f32 v{vT0}, v{vTS}, v{vTS+1}, v{vTS+2}", f"v_min_f32 v{vT0}, v{vT0}, v{vTS+3}",
                            f"v_cmp_nle_f32 vcc, s{sTlo}, v{vT0}", f"s_cbranch_vccnz L_stub_{name}", f"L_back_{name}:"]
        else:
            k = out.index(f"s_cbranch_vccnz L_stub_{name}")
            out.insert(k + 1, f"L_back_{name}:")
        return out

    def scaleO(self, q, f):
        L = []
        oc, d = Oreg(q, 0)
        if oc == "v":
            for r in range(64): L.append(f"v_mul_f32 v{d+r}, v{f}, v{d+r}")
        else:
            for r in range(0, 64, 4):
                L += [f"v_accvgpr_read_b32 v{48+k}, a{d+r+k}" for k in range(4)]
                L += [f"v_mul_f32 v{48+k}, v{f}, v{48+k}" for k in range(4)]
                L += [f"v_accvgpr_write_b32 a{d+r+k}, v{48+k}" for k in range(4)]
        return L
    def rare(self, p):
        L = [f"L_rare{p}:", "s_waitcnt lgkmcnt(0)", "s_nop 7", "s_nop 7"]
        b = vS[p]; o = vS[1 - p]
        for h in range(2):
            L.append(f"v_add_u32 v{vT0}, s{sP0 + h}, v{vK}")
            for grp in range(2):
                for k in range(4):
                    n = 4 * grp + k
                    L.append(f"ds_read_b128 {self.F(4+k)}, v{vT0} offset:{(n>>1)*2048 + (n&1)*256}")
                L.append("s_waitcnt lgkmcnt(0)")
                for k in range(4): L += self.qk(8 * h + 4 * grp + k, 4 + k, p, czero=True)
        L += ["s_nop 7", "s_nop 7"]
        for q in range(4):
            s = b + 8 * q; m = vTS + q
            L += [f"v_max3_f32 v{m}, v{s}, v{s+1}, v{s+2}", f"v_max3_f32 v{m}, v{m}, v{s+3}, v{s+4}", f"v_max3_f32 v{m}, v{m}, v{s+5}, v{s+6}", f"v_max_f32 v{m}, v{m}, v{s+7}",
                  f"v_mov_b32 v{vT0}, v{m}", "s_nop 1", f"v_permlane32_swap_b32 v{vT0}, v{m}", "s_nop 1", f"v_max_f32 v{m}, v{m}, v{vT0}",
                  f"v_mov_b32 v{vT0}, v{m}", "s_nop 1", f"v_permlane16_swap_b32 v{vT0}, v{m}", "s_nop 1", f"v_max_f32 v{m}, v{m}, v{vT0}",
                  f"v_sub_f32 v{m}, 0, v{m}"]
        L += [f"s_cmp_lg_u32 s{sFirst}, 0", f"s_cbranch_scc1 L_rare{p}_a"]
        for q in range(4): L.append(f"v_min_f32 v{vTS+q}, v{vTS+q}, v{vC+4*q}")
        for q in range(4):
            L += [f"v_sub_f32 v{vT0}, v{vTS+q}, v{vC+4*q}", f"v_exp_f32 v{vT0}, v{vT0}", "s_nop 0", f"v_mul_f32 v{vL+q}, v{vT0}, v{vL+q}"] + self.scaleO(q, vT0)
        L.append(f"L_rare{p}_a:")
        for q in range(4):
            L.append(f"v_sub_f32 v{vT0}, v{vTS+q}, v{vC+4*q}")
            for r in range(8): L += [f"v_add_f32 v{o+8*q+r}, v{o+8*q+r}, v{vT0}", f"v_add_f32 v{b+8*q+r}, v{b+8*q+r}, v{vTS+q}"]
            for r in range(4): L.append(f"v_mov_b32 v{vC+4*q+r}, v{vTS+q}")
        L += self.softmax(p)[:-1] + ["s_nop 1", f"s_setpc_b64 s[{sRet}:{sRet+1}]"]
        return L

    def tail(self):
        L = []
        R1, R2o, X48, LM, ST, GB, UB, ZB, OB, TB = 24576, 0, 16384, 22528, 23040, 24576, 12288, 0, 4096, 12288
        vR = [22, 23, 24, 25]; vSel = 16
        def ureg(n): return 64 + 4 * n if n < 16 else (128 + 4 * (n - 16) if n < 20 else (192 + 4 * (n - 20) if n < 24 else 32 + 4 * (n - 24)))
        def areg(n): return (144 + 4 * n if n < 12 else 208 + 4 * (n - 12)) if n < 24 else (128 + 4 * (n - 24) if n < 28 else 192 + 4 * (n - 28))
        wq = [self.wload("v", ureg(n), n) for n in range(32)] + [self.wload("a", 4 * n, n) for n in range(32)] + [self.wload("a", areg(n), n) for n in range(32)]
        def wnext():
            ld, post = wq.pop(0); return ld + post
        L += self.stamp("loopend")
        L += ["v_permlane32_swap_b32 v8, v10", "v_permlane32_swap_b32 v9, v11", f"v_permlane32_swap_b32 v{vC}, v{vC+8}", f"v_permlane32_swap_b32 v{vC+4}, v{vC+12}",
              "v_add_f32 v8, v8, v10", "v_add_f32 v10, v9, v11", f"s_add_u32 m0, s{sLds}, {TB}",
              f"v_permlane16_swap_b32 v{vC}, v{vC+4}", "v_permlane16_swap_b32 v8, v10", f"s_lshl_b32 s{t0}, s{sWave}, 12", f"v_mov_b32 v9, v{vC}", "v_add_f32 v8, v8, v10",
              f"s_add_u32 s{t0}, s{t0}, {DW_F}"]
        for j in range(4): L += [f"s_xor_b32 s{t1}, s{sWave}, {j}", f"s_mul_i32 s{t1}, s{t1}, {REG}", f"v_add_u32 v{vR[j]}, s{t1}, v0"]
        L += [f"v_lshlrev_b32 v26, 3, v{vLane}"]
        for j in range(4): L.append(f"v_sub_u32 v{28+j}, v{vR[j]}, v26")
        L += ["L_redo:", f"ds_write_b64 v28, v[8:9] offset:{LM}"]
        sel = [f"v_and_b32 v26, 15, v{vLane}", f"v_lshrrev_b32 v27, 4, v{vLane}", "v_lshlrev_b32 v27, 2, v27", "v_sub_u32 v26, v26, v27",
              f"v_mov_b32 v{vSel}, 0", f"v_mov_b32 v{vSel+1}, 0", f"v_mov_b32 v{vSel+4}, 0", f"v_mov_b32 v{vSel+5}, 0",
              "v_and_b32 v27, 1, v26", "v_lshlrev_b32 v27, 4, v27", "v_mov_b32 v7, 0x3f80", "v_lshlrev_b32 v27, v27, v7", "v_lshrrev_b32 v26, 1, v26",
              "v_cmp_eq_u32 vcc, 0, v26", f"v_cndmask_b32 v{vSel+2}, v{vSel}, v27, vcc", "v_cmp_eq_u32 vcc, 1, v26", f"v_cndmask_b32 v{vSel+3}, v{vSel}, v27, vcc", "s_nop 0"]
        k = 0
        for j in (1, 2, 3):
            for qb in range(2):
                for kp in range(2):
                    o = 128 + 64 * qb + 16 * j + 8 * kp; t = 32 + 4 * (k % 8); k += 1
                    L += [f"v_cvt_pk_bf16_f32 v{t+r}, v{o+2*r}, v{o+2*r+1}" for r in range(4)]
                    L.append(f"ds_write_b128 v{vR[0]}, {R4('v', t)} offset:{R1 + ((j-1)*4 + qb*2 + kp)*1024}")
                    L += wnext()
                    L += sel[:2]; sel = sel[2:]
        assert not sel
        Alo, Ahi = R4("v", vSel + 2), R4("v", vSel)
        L += ["@lg0", "s_barrier"] + self.stamp("B1")
        L += [f"ds_read_b64 {R2('v', 8+2*j)}, v{28+j} offset:{LM}" for j in (1, 2, 3)]
        k = 0; rd = []; mf = []
        for j in (1, 2, 3):
            for qb in range(2):
                for kp in range(2):
                    t = 32 + 4 * (k % 8); k += 1; o = 128 + 64 * qb + 8 * kp
                    rd.append(f"ds_read_b128 {R4('v', t)}, v{vR[j]} offset:{R1 + ((j-1)*4 + qb*2 + kp)*1024}")
                    mf += [f"{MF} {R4('v', o)}, {Alo}, {R4('v', t)}, {R4('v', o)}", f"{MF} {R4('v', o+4)}, {Ahi}, {R4('v', t)}, {R4('v', o+4)}"]
        L += rd[:8]
        L += [f"s_lshl_b32 s{t1}, s2, 2", f"s_add_u32 s{t1}, s{t1}, s{sWave}", f"s_lshl_b32 s{sXo}, s{t1}, 13", f"s_add_u32 s{sXo}, s{sXo}, {XCH}",
              f"s_lshl_b32 s{t3}, s{t1}, 7", f"s_add_u32 s{t3}, s{t3}, {FLAG_XCH}", f"s_add_u32 s{t2}, s{sXo}, 4096"]
        L += ["v_xor_b32 v26, v9, v11", "v_xor_b32 v27, v9, v13", "v_xor_b32 v7, v9, v15", "v_or3_b32 v26, v26, v27, v7", "v_cmp_ne_u32 vcc, 0, v26",
              "s_cbranch_vccnz L_slowA", "L_back_slowA:", "v_add_f32 v8, v8, v10", "v_add_f32 v12, v12, v14"]
        gaps = [[] for _ in range(24)]
        for n in range(4): gaps[2 * n + 1].append(rd[8 + n])
        for n in range(4):
            ld, post = wq.pop(0); gaps[4 * n + 2] += ld; gaps[4 * n + 3] += post
        gaps[0] += ["v_add_f32 v8, v8, v12", f"v_lshlrev_b32 v26, 3, v{vLane}"]
        gaps[18] += [f"buffer_store_dwordx2 v[8:9], v26, {S(sWS)}, s{t2} offen sc1"]
        def bread(fi, buf):
            s, rb = fi
            return f"ds_read_b128 {R4('v', 240+4*buf)}, v{vR[s>>1]} offset:{X48 + (rb*2 + (s&1))*1024}"
        fl = [(s, rb) for s in range(8) for rb in range(3)] + [(s, rb) for s in range(8) for rb in range(2)]
        for n in range(3): gaps[19 + n].append(bread(fl[n], n))
        L += weave(mf, gaps) + ["s_nop 3"]
        for qb in range(2):
            for kp in range(2):
                o = 128 + 64 * qb + 8 * kp; t = 208 + 4 * (qb * 2 + kp)
                L += [f"v_cvt_pk_bf16_f32 v{t+r}, v{o+2*r}, v{o+2*r+1}" for r in range(4)]
                L.append(f"buffer_store_dwordx4 {R4('v', t)}, v0, {S(sWS)}, s{sXo} offen offset:{(qb*2+kp)*1024} sc1 ;#xch")
        L += self.stamp("pub")
        gacc = lambda eb, rb: 144 + (rb * 4 + eb) * 4
        uacc = lambda eb, rb: 208 + (rb * 4 + eb) * 4
        mf = []; gaps = [[] for _ in range(160)]
        for n, (s, rb) in enumerate(fl):
            for eb in range(4):
                if n < 24: d = gacc(eb, rb); w = R4("a", (s * 4 + eb) * 4)
                else: d = uacc(eb, rb); w = R4("v", ureg(s * 4 + eb))
                mf.append(f"{MF} {R4('v', d)}, {w}, {R4('v', 240+4*(n%4))}, {R4('v', d) if s else '0'}")
            g = 4 * n
            if n + 3 < 40: gaps[g].append(bread(fl[n + 3], (n + 3) % 4))
            if n + 1 < 40:
                s2, rb2 = fl[n + 1]
                wr = f"a[{s2*16}:{s2*16+15}]" if n + 1 < 24 else " ".join(R4("v", ureg(s2 * 4 + e)) for e in range(4))
                gaps[g + 3].append(f"@need {R4('v', 240+4*((n+1)%4))} {wr}")
            gaps[g + 1] += self.stamp(f"gu{n}")
            if n == self.xflag: gaps[g + 2] += ["@vm xch"] + self.flagstore(7, t3)
            elif n < 2 or n in (9, 24): pass
            elif 22 <= n < 27 and n != 24:
                k = n - 22 - (n > 24)
                gaps[g + 2].append(f"buffer_load_dwordx4 v0, {S(sWS)}, s{t0} offen offset:{k*1024} sc1 lds ;#tap")
            else:
                ld, post = wq.pop(0); gaps[g + 2] += ld; gaps[g + 3] += post
        ph2 = [f"v_mov_b32 v7, s{sTag}"]
        k = 0; pend = []
        for j in (1, 2, 3):
            for qb in range(2):
                for kp in range(2):
                    o = 128 + 64 * qb + 16 * j + 8 * kp; t, u = ((2, 12), (12, 2))[k % 2]; k += 1
                    ph2 += [f"v_accvgpr_read_b32 v{t+r}, a{o+r}" for r in range(4)] + pend
                    ph2 += [f"v_cvt_pk_bf16_f32 v{t}, v{t}, v{t+1}", f"v_cvt_pk_bf16_f32 v{t+1}, v{t+2}, v{t+3}"]
                    ph2 += [f"v_accvgpr_read_b32 v{u+r}, a{o+4+r}" for r in range(4)]
                    ph2 += [f"v_cvt_pk_bf16_f32 v{t+2}, v{u}, v{u+1}", f"v_cvt_pk_bf16_f32 v{t+3}, v{u+2}, v{u+3}"]
                    pend = [f"ds_write_b128 v{vR[0]}, {R4('v', t)} offset:{R2o + ((j-1)*4 + qb*2 + kp)*1024}"]
        ph2 += pend
        left = spread(gaps, ph2, list(range(0, 160)), force=True)
        print("   ph2 left", len(left), "wq left", len(wq))
        L += weave(mf, gaps) + left
        L += ["@lg0", "s_barrier"] + self.stamp("B1p")
        c0 = -2 * 0.7978845608028654 * LOG2E / ALPHA; c1 = c0 * 0.044715 / ALPHA ** 2
        L += [f"v_mov_b32 v2, {f2u(c0):#x}", f"v_mov_b32 v3, {f2u(c1):#x}"]
        L += [f"v_and_b32 v4, 15, v{vLane}", f"v_lshrrev_b32 v5, 4, v{vLane}", "v_lshlrev_b32 v12, 4, v4", f"v_add_u32 v12, s{sLds}, v12",
              f"s_lshl_b32 s{t1}, s{sTown}, 14", f"s_lshl_b32 s{t2}, s{sWave}, 7", f"s_add_u32 s{t1}, s{t1}, s{t2}",
              "v_lshlrev_b32 v13, 11, v5", "v_lshl_add_u32 v13, v4, 3, v13", f"v_add_u32 v13, s{t1}, v13", "v_add_u32 v14, 8192, v13"]
        exq = [a + b for a, b in wq[:-20]]; wq = wq[-20:]
        exx = [[f"buffer_load_dwordx2 {R2('v', 240+2*(rb*4+r))}, v{13+rb}, {S(sX)}, 0 offen offset:{r*512}"] for rb in range(2) for r in range(4)]
        taps = [f"ds_read_b128 {R4('v', 64+4*i)}, v12 offset:{TB + i*256}" for i in range(15)]
        def gelu(regs, extra):
            o = []
            for d in regs:
                X = [R2("v", d + 2 * k) for k in range(4)]; Y = [R2("v", 32 + 2 * k) for k in range(4)]
                o += [f"v_pk_mul_f32 {y}, {x}, {x}" for x, y in zip(X, Y)]
                o += [f"v_pk_fma_f32 {y}, {y}, v[2:3], v[2:3] op_sel:[0,1,0] op_sel_hi:[1,1,0]" for y in Y]
                o += [f"v_pk_mul_f32 {y}, {y}, {x}" for x, y in zip(X, Y)]
                o += extra(0, d) + [f"v_exp_f32 v{32+k}, v{32+k}" for k in range(8)]
                o += [f"v_pk_add_f32 {y}, {y}, 1.0 op_sel_hi:[1,0]" for y in Y]
                o += extra(1, d) + [f"v_rcp_f32 v{32+k}, v{32+k}" for k in range(8)]
                o += [f"v_pk_mul_f32 {x}, {x}, {y}" for x, y in zip(X, Y)] + extra(2, d)
            return o
        def ex_g(k, d):
            o = exq.pop(0) if exq else []
            if k == 2:
                rb = (d - 144) // 16; sA, qA = R2("v", 40 + 2 * rb), R2("v", 46 + 2 * rb)
                X = [R2("v", d + 2 * k_) for k_ in range(4)]
                if (d - 144) % 16 == 0:
                    st = [f"v_pk_add_f32 {sA}, {X[0]}, {X[1]}", f"v_pk_mul_f32 {qA}, {X[0]}, {X[0]}", f"v_pk_add_f32 v[52:53], {X[2]}, {X[3]}", f"v_pk_mul_f32 v[54:55], {X[1]}, {X[1]}",
                          f"v_pk_fma_f32 {qA}, {X[2]}, {X[2]}, {qA}", f"v_pk_fma_f32 v[54:55], {X[3]}, {X[3]}, v[54:55]"]
                else:
                    st = [f"v_pk_add_f32 {sA}, {sA}, {X[0]}", f"v_pk_fma_f32 {qA}, {X[0]}, {X[0]}, {qA}", f"v_pk_add_f32 v[52:53], v[52:53], {X[1]}", f"v_pk_fma_f32 v[54:55], {X[1]}, {X[1]}, v[54:55]",
                          f"v_pk_add_f32 {sA}, {sA}, {X[2]}", f"v_pk_fma_f32 {qA}, {X[2]}, {X[2]}, {qA}", f"v_pk_add_f32 v[52:53], v[52:53], {X[3]}", f"v_pk_fma_f32 v[54:55], {X[3]}, {X[3]}, v[54:55]",
                          f"v_pk_add_f32 {sA}, {sA}, v[52:53]", f"v_pk_add_f32 {qA}, {qA}, v[54:55]"]
                o = st + o
                if d == 144: o += ["@vm tap"] + taps[:8]
                if d == 152: o += taps[8:]
            return o
        L += gelu([144 + 8 * n for n in range(6)], ex_g)
        pb = [124, 128, 132, 136, 140, 192, 196, 200, 204, 240, 244, 248]
        k = 0; rd = []; mf = []
        for j in (1, 2, 3):
            for qb in range(2):
                for kp in range(2):
                    t = pb[k]; k += 1; o = 128 + 64 * qb + 8 * kp
                    rd.append(f"ds_read_b128 {R4('v', t)}, v{vR[j]} offset:{R2o + ((j-1)*4 + qb*2 + kp)*1024}")
                    mf += [f"{MF} {R4('a', o)}, {Alo}, {R4('v', t)}, {R4('a', o)}", f"{MF} {R4('a', o+4)}, {Ahi}, {R4('v', t)}, {R4('a', o+4)}"]
        L += rd
        L += ["v_add_f32 v42, v42, v43", "v_add_f32 v48, v48, v49", "v_add_f32 v40, v40, v41", "v_add_f32 v44, v44, v45", "v_add_f32 v46, v46, v47", "v_add_f32 v50, v50, v51",
              "v_mov_b32 v41, v42", "v_mov_b32 v47, v48",
              "v_permlane32_swap_b32 v40, v44", "v_permlane32_swap_b32 v46, v50", "v_permlane32_swap_b32 v42, v41", "v_permlane32_swap_b32 v48, v47",
              "v_add_f32 v40, v40, v44", "v_add_f32 v42, v42, v41", "v_add_f32 v46, v46, v50", "v_add_f32 v48, v48, v47", "s_nop 0",
              "v_permlane16_swap_b32 v40, v42", "v_permlane16_swap_b32 v46, v48",
              "v_add_f32 v10, v40, v42", "v_add_f32 v11, v46, v48", f"ds_write_b64 v28, v[10:11] offset:{ST}"]
        gaps = [[] for _ in range(24)]
        gaps[1] += [f"buffer_load_dword v7, v6, {S(sWS)}, 0 offen sc1"]
        for n in range(1, 6):
            if exq:
                e = exq.pop(0); gaps[4 * n + 1] += e[:1]; gaps[4 * n + 2] += e[1:]
        L += [f"s_xor_b32 s{t3}, s{t3}, 512", f"v_mov_b32 v6, s{t3}"]
        adr = ["v_mul_u32_u24 v26, 272, v4", "v_lshl_add_u32 v26, v5, 4, v26", f"v_add_u32 v26, s{sLds}, v26",
               "v_lshrrev_b32 v27, 3, v4", f"v_mul_u32_u24 v27, {32*272}, v27", "v_add_u32 v27, v27, v26",
               "v_and_b32 v15, 1, v5", "v_lshrrev_b32 v12, 1, v5", "v_lshl_add_u32 v15, v15, 1, v12",
               f"v_mul_u32_u24 v12, {8*272}, v15", "v_lshl_add_u32 v12, v4, 4, v12", f"v_add_u32 v12, s{sLds}, v12",
               "v_lshrrev_b32 v62, 1, v15", "v_lshrrev_b32 v63, 3, v4", "v_lshl_add_u32 v62, v62, 1, v63", "v_lshlrev_b32 v62, 10, v62",
               "v_bfe_u32 v63, v4, 1, 1", "v_lshl_add_u32 v62, v63, 9, v62", "v_bfe_u32 v63, v4, 2, 1", "v_lshl_add_u32 v62, v63, 8, v62",
               "v_and_b32 v63, 1, v15", "v_lshl_add_u32 v62, v63, 7, v62", "v_and_b32 v63, 1, v4", "v_lshl_add_u32 v62, v63, 3, v62",
               "v_bfe_u32 v63, v62, 8, 2", "v_lshl_add_u32 v62, v63, 5, v62", "v_bfe_u32 v63, v62, 10, 1", "v_lshl_add_u32 v62, v63, 4, v62", f"v_add_u32 v15, s{sLds}, v62",
               f"v_mov_b32 v62, {f2u(1/256):#x}", f"v_and_b32 v63, 31, v{vLane}", "v_lshlrev_b32 v63, 3, v63"]
        spread(gaps, adr, list(range(0, 24)))
        L += weave(mf, gaps)
        L += ["@lg0", "s_barrier"] + self.stamp("B2")
        L += [f"ds_read_b64 {R2('v', 38+2*j)}, v{28+j} offset:{ST}" for j in (1, 2, 3)]
        L += ["@need v7", f"v_cmp_ne_u32 vcc, s{sTag}, v7", f"s_xor_b32 s{sXo}, s{sXo}, 32768", f"s_add_u32 s{t2}, s{sXo}, 4096",
              "s_cbranch_vccnz L_spin_xc", "L_back_xc:"]
        self.stubs.append(self.spin("xc", 6, 7))
        exq = [[f"buffer_load_dwordx2 v[60:61], v63, {S(sWS)}, s{t2} offen sc1"]] + \
              [[f"buffer_load_dwordx4 {R4('v', 192+4*n)}, v0, {S(sWS)}, s{sXo} offen offset:{n*1024} sc1"] for n in range(4)] + exq + exx
        L += exq.pop(0) + exq.pop(0)
        L += ["v_pk_add_f32 v[10:11], v[10:11], v[40:41]", "v_pk_add_f32 v[42:43], v[42:43], v[44:45]", "v_pk_add_f32 v[10:11], v[10:11], v[42:43]",
              "v_pk_mul_f32 v[10:11], v[10:11], v[62:63] op_sel_hi:[1,0]",
              "v_fma_f32 v11, -v10, v10, v11", "v_max_f32 v11, 0, v11", f"v_add_f32 v11, {f2u(1e-5 * ALPHA**2):#x}, v11", "v_rsq_f32 v52, v11", "v_sub_f32 v10, 0, v10",
              "v_mul_f32 v53, v10, v52",
              "v_mov_b32 v56, v52", "v_mov_b32 v57, v53", "s_nop 0",
              "v_permlane32_swap_b32 v52, v56", "v_permlane32_swap_b32 v53, v57",
              "v_mov_b32 v58, v56", "v_mov_b32 v59, v57", "v_mov_b32 v54, v52", "v_mov_b32 v55, v53",
              "v_permlane16_swap_b32 v56, v58", "v_permlane16_swap_b32 v57, v59", "v_permlane16_swap_b32 v52, v54", "v_permlane16_swap_b32 v53, v55"]
        gq = []
        for rb in (2, 0, 1):
            for eb in range(4):
                d = gacc(eb, rb); c = R2("v", 52 + 2 * rb)
                gq.append([f"v_pk_fma_f32 {R2('v', d+h)}, {R2('v', d+h)}, {c}, {c} op_sel:[0,0,1] op_sel_hi:[1,0,1]" for h in (0, 2)] +
                          [f"ds_write_b128 v{27 if rb == 2 else 26}, {R4('v', d)} offset:{GB + (0 if rb == 2 else (8 + 16*rb)*272) + eb*64}"])
        def two():
            a, b = gq.pop(0), gq.pop(0)
            return a[:2] + b[:2] + a[2:] + b[2:]
        uw = []
        def ex_u(k, d):
            o = []
            if k == 2:
                rb = (d - 208) // 16; eb = ((d - 208) % 16) // 4
                uw.extend(f"ds_write_b128 v26, {R4('v', d+4*e)} offset:{UB + rb*16*272 + (eb+e)*64}" for e in range(2))
            if gq and k < 2: o += two()
            elif uw: o += uw[:2]; del uw[:2]
            if exq: o += exq.pop(0)
            return o
        L += gelu([208 + 8 * n for n in range(4)], ex_u)
        assert not gq and not uw, (len(gq), len(uw))
        L += self.stamp("gelu")
        ib = [176, 180, 184, 188, 124, 128, 132, 136]; NB = 8
        cread = lambda i: f"ds_read_b128 {R4('v', ib[i%NB])}, v12 offset:{GB + (i+1)*272}"
        L += [cread(i) for i in range(6)]
        L += ["v_mov_b32 v10, v8", "v_mov_b32 v11, v9", "s_nop 1", "v_permlane32_swap_b32 v10, v8", "v_permlane32_swap_b32 v11, v9"]
        for i in range(22):
            if i % 2 == 0:
                if i + 6 < 22: L += [cread(i + 6), cread(i + 7)]
                elif i + 6 < 26: L += [f"ds_read_b128 {R4('v', 208+4*o)}, v12 offset:{UB + o*272}" for o in range(2 * (i - 16), 2 * (i - 16) + 4)]
                for _ in range(2):
                    if exq and 2 <= i <= 18: L += exq.pop(0)
            for o in range(max(0, i - 14), min(7, i) + 1):
                tap = i - o
                for h in (0, 2):
                    a_, x_, w_ = R2("v", 144 + 4 * o + h), R2("v", ib[i % NB] + h), R2("v", 64 + 4 * tap + h)
                    L.append(f"v_pk_mul_f32 {a_}, {x_}, {w_}" if tap == 0 else f"v_pk_fma_f32 {a_}, {x_}, {w_}, {a_}")
        print("   exq left", len(exq))
        while exq: L += exq.pop(0)
        L += self.stamp("conv")
        L += ["v_cmp_ne_u32 vcc, v9, v61", "s_cbranch_vccnz L_slowB", "L_back_slowB:", "v_add_f32 v8, v8, v60", "@need v[192:207]"]
        mf = []
        for qb in range(2):
            for kp in range(2):
                o = 128 + 64 * qb + 8 * kp; t = 192 + 4 * (qb * 2 + kp)
                mf += [f"{MF} {R4('a', o)}, {Alo}, {R4('v', t)}, {R4('a', o)}", f"{MF} {R4('a', o+4)}, {Ahi}, {R4('v', t)}, {R4('a', o+4)}"]
        gaps = [[] for _ in range(8)]
        gaps[0] += [f"v_mul_f32 v8, {f2u(ALPHA):#x}, v8"]; gaps[1] += ["v_rcp_f32 v8, v8"]; gaps[2] += ["v_mov_b32 v9, v8"]; gaps[4] += ["v_permlane16_swap_b32 v8, v9"]
        gaps[0] += ["v_lshlrev_b32 v5, 5, v5"]; gaps[2] += [f"v_xor_b32 v176, v5, v{vR[0]}"]
        spread(gaps, [f"v_xor_b32 v{176+2*j}, v5, v{vR[j]}" for j in (1, 2, 3)] + [f"v_xor_b32 v{177+2*j}, 16, v{176+2*j}" for j in range(4)], [3, 5, 6, 7])
        L += weave(mf, gaps) + ["s_nop 1"]
        for o in range(0, 8, 2):
            L += [f"v_pk_mul_f32 {R2('v', 144+4*o+h)}, {R2('v', 144+4*o+h)}, {R2('v', 208+4*o+h)}" for h in (0, 2, 4, 6)]
            L += [f"v_cvt_pk_bf16_f32 v{144+4*o+h}, v{144+4*o+2*h}, v{145+4*o+2*h}" for h in range(4)]
            L += [f"v_xor_b32 v{10+e}, {(o+e)*16}, v15" for e in range(2)]
            L += [f"ds_write_b64 v{10+e}, {R2('v', 144+4*o+2*e)} offset:{ZB}" for e in range(2)]
        for qb in range(2):
            for kp in range(2):
                o = 128 + 64 * qb + 8 * kp; t = 64 + 8 * (qb * 2 + kp)
                L += [f"v_accvgpr_read_b32 v{t+r}, a{o+r}" for r in range(8)]
                L += [f"v_pk_mul_f32 {R2('v', t+2*r)}, {R2('v', t+2*r)}, v[8:9] op_sel:[0,{qb}] op_sel_hi:[1,{qb}]" for r in range(4)]
                L += [f"v_cvt_pk_bf16_f32 v{t+r}, v{t+2*r}, v{t+2*r+1}" for r in range(4)]
                L.append(f"ds_write_b128 v{vR[0]}, {R4('v', t)} offset:{OB + (qb*2+kp)*1024}")
        L += ["@lg0", "s_barrier"] + self.stamp("B3")
        fl = [(0, s, rb) for s in range(8) for rb in range(2)] + [(1, s, rb) for s in range(8) for rb in range(2)]
        def fread(n):
            m, s, rb = fl[n]
            return f"ds_read_b128 {R4('v', 96+4*(n%8))}, v{vR[s>>1] if m else 176+s} offset:{(OB if m else ZB) + (rb*2 + (s&1))*1024}"
        L += [fread(n) for n in range(4)]
        facc = lambda eb, rb: 32 + (rb * 4 + eb) * 4
        for rb in range(2):
            for r in range(4):
                x = 240 + 2 * (rb * 4 + r)
                L += [f"v_lshlrev_b32 v{facc(0, rb)+r}, 16, v{x}", f"v_and_b32 v{facc(1, rb)+r}, s{sMask}, v{x}",
                      f"v_lshlrev_b32 v{facc(2, rb)+r}, 16, v{x+1}", f"v_and_b32 v{facc(3, rb)+r}, s{sMask}, v{x+1}"]
        mf = []; gaps = [[] for _ in range(128)]
        for n, (m, s, rb) in enumerate(fl):
            for eb in range(4):
                d = facc(eb, rb); w = R4("a", areg(s * 4 + eb) if m else (s * 4 + eb) * 4)
                mf.append(f"{MF} {R4('v', d)}, {R4('v', 96+4*(n%8))}, {w}, {R4('v', d)}")
            g = 4 * n
            if n + 4 < 32: gaps[g].append(fread(n + 4))
            if n + 1 < 32:
                m2, s2, _ = fl[n + 1]
                wr = " ".join(R4("a", areg(s2 * 4 + e) if m2 else (s2 * 4 + e) * 4) for e in range(4))
                gaps[g + 3].append(f"@need {R4('v', 96+4*((n+1)%8))} {wr}")
            if wq:
                ld, post = wq.pop(0); gaps[g + 2] += ld; gaps[g + 3] += post
        L += weave(mf, gaps) + ["s_nop 3"] + self.stamp("fin")
        for rb in range(2):
            for r in range(4):
                t = 128 + 2 * (rb * 4 + r)
                L += [f"v_cvt_pk_bf16_f32 v{t}, v{facc(0, rb)+r}, v{facc(1, rb)+r}", f"v_cvt_pk_bf16_f32 v{t+1}, v{facc(2, rb)+r}, v{facc(3, rb)+r}",
                      f"buffer_store_dwordx2 {R2('v', t)}, v{13+rb}, {S(sOut)}, 0 offen offset:{r*512}"]
        def bcast(src, d):
            return [f"v_mov_b32 v{d}, v{src}", f"v_mov_b32 v{d+2}, v{src}", "s_nop 1", f"v_permlane32_swap_b32 v{d}, v{d+2}", "s_nop 1",
                    f"v_mov_b32 v{d+1}, v{d}", f"v_mov_b32 v{d+3}, v{d+2}", "s_nop 1", f"v_permlane16_swap_b32 v{d}, v{d+1}", f"v_permlane16_swap_b32 v{d+2}, v{d+3}", "s_nop 1"]
        A = ["L_slowA:", f"s_cmp_lg_u32 s{sRedo}, 0", "s_cbranch_scc1 L_back_slowA", f"s_mov_b32 s{sRedo}, 1", "s_waitcnt vmcnt(0) lgkmcnt(0)",
             f"s_sub_u32 s{sWoff}, s{sWoff}, {3*4096}",
             "v_min3_f32 v26, v9, v11, v13", "v_min_f32 v26, v26, v15", "v_sub_f32 v27, v26, v9", "v_exp_f32 v27, v27", "v_mov_b32 v9, v26", "v_mul_f32 v8, v8, v27"] + bcast(27, 2)
        for q in range(4): A += self.scaleO(q, 2 + q)
        A += ["s_barrier", "s_branch L_redo"]
        B = ["L_slowB:", "s_waitcnt vmcnt(0)", "v_min_f32 v10, v9, v61", "v_sub_f32 v9, v10, v9", "v_sub_f32 v61, v10, v61", "v_exp_f32 v9, v9", "v_exp_f32 v61, v61", "s_nop 0",
             "v_mul_f32 v8, v8, v9", "v_mul_f32 v60, v60, v61", "v_mov_b32 v10, v9", "v_mov_b32 v11, v61", "s_nop 1",
             "v_permlane16_swap_b32 v9, v10", "v_permlane16_swap_b32 v61, v11", "s_nop 1"]
        for qb in range(2):
            f1, f2 = (9, 10)[qb], (61, 11)[qb]
            for r in range(16):
                o = 128 + 64 * qb + r
                B += [f"v_accvgpr_read_b32 v2, a{o}", f"v_mul_f32 v2, v{f1}, v2", f"v_accvgpr_write_b32 a{o}, v2"]
            for r in range(8):
                x = 192 + 8 * qb + r
                B += [f"v_lshlrev_b32 v2, 16, v{x}", f"v_and_b32 v3, s{sMask}, v{x}", f"v_mul_f32 v2, v{f2}, v2", f"v_mul_f32 v3, v{f2}, v3", f"v_cvt_pk_bf16_f32 v{x}, v2, v3"]
        B += ["s_nop 1", "s_branch L_back_slowB"]
        self.stubs += [A, B]
        return L

    def fold(self):
        L = ["L_fold:"]
        fst = lambda k: [f"s_memrealtime s[{88+2*k}:{89+2*k}]"] if self.stamps else []
        sF = sB; sA, sBm, sU = sX, sWq, sWk
        L += [f"s_sub_u32 s{sF}, s2, 252"]
        L += srd(sBm, f"s{pWm}", f"s{pWm+1}", 262144) + srd(sU, f"s{pWup}", f"s{pWup+1}", 262144)
        L += srd(sA, f"s{pDw}", f"s{pDw+1}", 7680)
        L += ["v_lshrrev_b32 v12, 4, v0", "v_lshlrev_b32 v12, 9, v12", "v_lshl_add_u32 v12, v8, 3, v12", f"s_lshl_b32 s{t0}, s{sF}, 7",
              f"buffer_load_dwordx2 v[2:3], v12, {S(sA)}, s{t0} offen"]
        L += [f"s_lshl_b32 s{t2}, s{sWave}, 15", f"v_add_u32 v24, s{t2}, v13",
              "v_bfe_u32 v16, v8, 2, 1", "v_bfe_u32 v17, v8, 3, 1", "v_lshl_add_u32 v16, v16, 1, v17", "v_and_b32 v17, 3, v8",
              "v_lshl_add_u32 v18, v16, 2, v17", "v_xor_b32 v18, v18, v10", "v_lshlrev_b32 v18, 4, v18",
              "v_lshl_add_u32 v16, v16, 3, v17", "v_lshl_add_u32 v18, v16, 9, v18", f"v_add_u32 v32, s{sLds}, v18",
              "v_xor_b32 v18, v8, v10", "v_lshlrev_b32 v18, 4, v18", "v_lshl_add_u32 v18, v8, 9, v18", f"v_add_u32 v36, s{sLds}, v18"]
        L += [f"v_xor_b32 v{b+k}, {k*64}, v{b}" for b in (32, 36) for k in range(1, 4)]
        L += [f"v_xor_b32 v{40+k}, {k*32}, v24" for k in range(8)]
        mats = ((pWao, "v", 128, False), (pWdn, "a", 0, False), (pWv, "a", 128, True))
        def issue(grp):
            o = []
            ptr, c, base, natural = mats[grp // 2]
            if grp % 2 == 0: o += srd(sA, f"s{ptr}", f"s{ptr+1}", 131072)
            for k in range(16):
                if k % 4 == 0: o += [f"s_add_u32 m0, s{sLds}, {(grp & 1)*16384 + k*1024}", f"s_mov_b32 s{t0}, {(grp & 1)*16384 + k*1024}"]
                sw = (k & 7) if natural else ((k & 1) | ((k >> 2) << 1))
                o.append(f"buffer_load_dwordx4 v{40+sw}, {S(sA)}, s{t0} offen offset:{(k&3)*1024} lds ;#fa{grp}")
            return o
        L += issue(0) + issue(1)
        L += ["v_lshlrev_b32 v20, 16, v2", f"v_and_b32 v21, s{sMask}, v2", "v_lshlrev_b32 v22, 16, v3", f"v_and_b32 v23, s{sMask}, v3"]
        L += [f"v_mul_f32 v{20+r}, {f2u(1/ALPHA):#x}, v{20+r}" for r in range(4)]
        for grp in range(6):
            ptr, c, base, natural = mats[grp // 2]
            L.append(f"@vm fa{grp}")
            for ks in range(8):
                for hb in range(2):
                    L.append(f"ds_read_b128 {R4(c, base + (ks*4 + (grp&1)*2 + hb)*4)}, v{(36 if natural else 32) + (ks&3)} offset:{(grp&1)*16384 + hb*(8192 if natural else 2048) + (ks>>2)*256}")
            L.append("@lg0")
            if grp + 2 < 6: L += issue(grp + 2)
        L += fst(0) + ["s_barrier"]
        L += [f"v_lshrrev_b32 v12, 3, v{vLane}", f"v_and_b32 v13, 7, v{vLane}", "v_lshlrev_b32 v13, 4, v13",
              f"s_lshl_b32 s{t0}, s{sWave}, 6", f"v_add_u32 v12, s{t0}, v12", f"s_lshl_b32 s{t0}, s{sF}, 7", f"v_add_u32 v13, s{t0}, v13",
              "v_lshl_add_u32 v14, v12, 9, v13", "v_lshl_add_u32 v15, v12, 10, v13", f"s_lshl_b32 s{t1}, s{sWave}, 13"]
        for im in range(4):
            for p in range(8):
                so = (im * 131072 + p * 4096) if im < 2 else ((512 if im == 2 else 0) + p * 8192)
                L += [f"s_add_u32 m0, s{t1}, {im*32768 + p*1024}", f"s_mov_b32 s{t0}, {so}",
                      f"buffer_load_dwordx4 v{14 if im < 2 else 15}, {S(sBm if im < 2 else sU)}, s{t0} offen lds ;#im"]
        L += ["v_lshlrev_b32 v12, 4, v0", "v_cmp_gt_u32 vcc, 240, v0", "v_mov_b32 v13, 0x40000000", "s_nop 0", "v_cndmask_b32 v12, v13, v12, vcc",
              f"s_mul_i32 s{t0}, s{sF}, 4096", f"s_add_u32 s{t0}, s{t0}, {DW_F}",
              f"buffer_store_dwordx4 v[20:23], v12, {S(sWS)}, s{t0} offen sc1"]
        L += ["v_lshrrev_b32 v16, 2, v8", "v_lshl_add_u32 v16, v10, 3, v16", "v_lshlrev_b32 v16, 7, v16", "v_and_b32 v18, 3, v8",
              "v_lshl_add_u32 v26, v18, 3, v16", "v_add_u32 v27, 65536, v26",
              "v_lshlrev_b32 v31, 10, v18", "v_lshl_add_u32 v31, v9, 8, v31", "v_lshrrev_b32 v18, 2, v8", "v_lshl_add_u32 v31, v18, 4, v31",
              f"s_lshl_b32 s{t0}, s{sWave}, 13", f"v_add_u32 v27, s{t0}, v27", f"v_add_u32 v31, s{t0}, v31", "v_add_u32 v31, 65536, v31",
              f"v_lshlrev_b32 v28, 4, v{vLane}", "v_add_u32 v29, 131072, v28", f"v_add_u32 v30, s{t0}, v29",
              f"s_xor_b32 s{t1}, s{sWave}, s{sF}", f"s_lshl_b32 s{t1}, s{t1}, 13", f"s_lshl_b32 s{t2}, s{sF}, 15", f"s_add_u32 s{sXo}, s{t1}, s{t2}"]
        L += self.tagcalc()
        L += ["@vm im", "s_barrier"] + fst(1)
        def gemm(c, abase, bread):
            o = [x for eb in range(4) for x in bread(0, eb, 32 + 4 * eb)]
            for ks in range(8):
                o.append(f"@need v[{32+16*(ks&1)}:{47+16*(ks&1)}]")
                if ks < 7: o += [x for eb in range(4) for x in bread(ks + 1, eb, 32 + 16 * (1 - (ks & 1)) + 4 * eb)]
                for db in range(4):
                    for eb in range(4):
                        d = 64 + (db * 4 + eb) * 4
                        o.append(f"{MF} {R4('v', d)}, {R4(c, abase+(ks*4+db)*4)}, {R4('v', 32+16*(ks&1)+4*eb)}, {R4('v', d) if ks else '0'}")
            o += ["s_nop 7"]
            return o
        def trP(im):
            return lambda ks, eb, t: [f"ds_read_b64_tr_b16 {R2('v', t+2*j)}, v26 offset:{im*32768 + ks*4096 + j*512 + eb*32}" for j in range(2)]
        def pack(p, eb, t):
            o = []
            for hb in range(2):
                d = 64 + ((2 * p + hb) * 4 + eb) * 4
                o += [f"v_cvt_pk_bf16_f32 v{t+2*hb}, v{d}, v{d+1}", f"v_cvt_pk_bf16_f32 v{t+2*hb+1}, v{d+2}, v{d+3}"]
            return o
        def emit_out(base, ob):
            o = []
            for p in range(2):
                for eb in range(4):
                    t = 32 + 4 * (p * 4 + eb)
                    o += pack(p, eb, t) + [f"ds_write_b128 v31, {R4('v', t)} offset:{p*4096 + eb*64}"]
            o += ["@lg0", "v_subrev_u32 v12, 65536, v30"]
            o += [f"ds_read_b128 {R4('v', ob+4*k)}, v12 offset:{k*1024}" for k in range(8)]
            for p in range(2):
                o.append(f"s_add_u32 s{t0}, s{sXo}, {base + p*4096}")
                for eb in range(4):
                    o.append(f"buffer_store_dwordx4 {R4('v', ob+4*(p*4+eb))}, v28, {S(sWS)}, s{t0} offen offset:{eb*1024} sc1")
            return o
        for im in range(2):
            for p in range(2):
                for eb in range(4):
                    t = 64 + 4 * (im * 8 + p * 4 + eb)
                    L += [f"ds_read_b64_tr_b16 {R2('v', t+2*j)}, v27 offset:{im*32768 + p*4096 + j*512 + eb*32}" for j in range(2)]
        L.append("@lg0")
        for im, base in ((0, WG_F), (1, WU_F)):
            for p in range(2):
                L.append(f"s_add_u32 s{t0}, s{sXo}, {base + p*4096}")
                for eb in range(4):
                    L.append(f"buffer_store_dwordx4 {R4('v', 64+4*(im*8+p*4+eb))}, v28, {S(sWS)}, s{t0} offen offset:{eb*1024} sc1")
        L += fst(2) + gemm("v", 128, trP(0)) + fst(3)
        for p in range(2):
            for eb in range(4):
                t = 32 + 4 * (p * 4 + eb)
                L += pack(p, eb, t) + [f"ds_write_b128 v30, {R4('v', t)} offset:{(p*4+eb)*1024}"]
        L += ["@lg0", "s_barrier"]
        L += gemm("a", 0, trP(1)) + fst(4) + emit_out(WD_F, 128) + fst(5)
        L += gemm("a", 128, lambda ks, eb, t: [f"ds_read_b128 {R4('v', t)}, v29 offset:{(ks*4+eb)*1024}"]) + emit_out(WV_F, 160) + ["s_waitcnt vmcnt(0)"]
        L += [f"s_lshl_b32 s{t0}, s{sF}, 5", f"s_add_u32 s{t0}, s{t0}, s{sWave}", f"s_lshl_b32 s{t1}, s{t0}, 2", f"s_add_u32 s{t1}, s{t1}, {FLAG_FOLD}",
              f"v_mov_b32 v7, s{sTag}", f"v_lshlrev_b32 v6, 26, v{vLane}", f"buffer_store_dword v7, v6, {S(sWS)}, s{t1} offen sc1",
              ] + ([] if not self.stamps else ["s_memrealtime s[86:87]", "s_waitcnt lgkmcnt(0)", "s_sub_u32 s86, s86, s84", "v_mov_b32 v8, s86", f"s_lshl_b32 s{t1}, s{sF}, 2", f"s_add_u32 s{t1}, s{t1}, s{sWave}", f"s_lshl_b32 s{t1}, s{t1}, 2",
              f"s_add_u32 s{t1}, s{t1}, {TS_OFF + (1 << 20)}", "v_mov_b32 v9, 0", f"buffer_store_dword v8, v9, {S(sWS)}, s{t1} offen"] + [x for k in range(6) for x in (f"s_sub_u32 s86, s{88+2*k}, s84", "v_mov_b32 v8, s86", f"buffer_store_dword v8, v9, {S(sWS)}, s{t1} offen offset:{64*(k+1)}")]) + [
              f"s_cmp_lg_u32 s{t0}, 0", "s_cbranch_scc1 L_end"]
        L += [f"v_lshrrev_b32 v12, 2, v{vLane}", "v_min_u32 v13, 13, v12", "v_min_u32 v14, 3, v12", f"v_and_b32 v15, 3, v{vLane}", "v_lshlrev_b32 v15, 2, v15",
              "v_lshl_add_u32 v12, v12, 7, v15", "v_lshl_add_u32 v13, v13, 7, v15", "v_lshl_add_u32 v14, v14, 7, v15", f"s_mov_b32 s{sCnt}, 0", "L_ep:", "s_sleep 8"]
        for n in range(17):
            so = FLAG_FOLD if n == 16 else FLAG_XA + n * 2048
            L += [f"s_mov_b32 s{t0}, {so}", f"buffer_load_dword v{32+n}, v{14 if n == 16 else (13 if n & 7 == 7 else 12)}, {S(sWS)}, s{t0} offen sc1"]
        L += ["s_waitcnt vmcnt(0)"]
        for n in range(17): L.append(f"v_xor_b32 v{32+n}, s{sTag}, v{32+n}")
        for n in range(1, 17, 2): L.append(f"v_or3_b32 v32, v32, v{32+n}, v{33+n}")
        L += ["v_cmp_ne_u32 vcc, 0, v32", f"s_add_u32 s{sCnt}, s{sCnt}, 1", f"s_cmp_gt_u32 s{sCnt}, 0x8000", "s_cbranch_scc1 L_ep2", "s_cbranch_vccnz L_ep", "L_ep2:",
              f"buffer_store_dword v7, v6, {S(sWS)}, 0 offen sc1", "s_endpgm"]
        return L

    def dump_stamps(self):
        if not self.stamps: return []
        L = ["s_waitcnt vmcnt(0)"] + self.stamp("end") + ["s_waitcnt lgkmcnt(0)", f"s_lshl_b32 s{t0}, s2, 2", f"s_add_u32 s{t0}, s{t0}, s{sWave}",
             f"s_lshl_b32 s{t0}, s{t0}, 7", f"s_add_u32 s{t0}, s{t0}, {TS_OFF}", "v_mov_b32 v2, 0"]
        for n in range(self.nst): L += [f"v_mov_b32 v3, s{STAMPS[n]}", f"buffer_store_dword v3, v2, {S(sWS)}, s{t0} offen offset:{4*n}"]
        return L

    def build(self, path):
        st = WState()
        ent = resolve(self.entry(), st)
        fold = resolve(self.fold(), st.copy())
        c = self.front() + self.stamp("loop")
        for j in range(14): c += self.iteration(j, False, f"i{j}")
        c += [f"s_cmp_lg_u32 s{sN15}, 0", "s_cbranch_scc1 L_n15"]
        common = resolve(c, st)
        G, nh = self.G, self.nhead
        sb = st.copy()
        pa = resolve(self.iteration(14, False, "i14") + self.iteration(15, True, "i15"), st)
        self.G, self.nhead = G, nh
        pb = resolve(["L_n15:"] + self.iteration(14, True, "l14") + ["s_branch L_tail"], sb)
        tl = self.tail()
        ta = resolve(tl, st.copy()); tb = resolve(tl, sb.copy())
        assert ta == tb, "tail waits differ between paths"
        tailc = ["L_tail:"] + ta + self.dump_stamps() + ["s_endpgm"]
        rare = [self.rare(0), self.rare(1)]
        a = Asm()
        a(f'.amdgcn_target "amdgcn-amd-amdhsa--gfx950"\n.text\n.globl {KN}\n.p2align 12\n.p2align 8\n.type {KN},@function\n{KN}:')
        a.extend(ent + common + pa + tailc + pb)
        for s_ in self.stubs + rare: a.extend(s_)
        a.extend(fold)
        a("L_end:\ns_endpgm")
        a(f""".section .rodata,"a"
.p2align 6
.amdhsa_kernel {KN}
.amdhsa_next_free_vgpr 512
.amdhsa_next_free_sgpr 102
.amdhsa_accum_offset 256
.amdhsa_group_segment_fixed_size 0
.amdhsa_kernarg_size 96
.amdhsa_user_sgpr_count 2
.amdhsa_user_sgpr_kernarg_segment_ptr 1
.amdhsa_system_sgpr_workgroup_id_x 1
.end_amdhsa_kernel""")
        hdr = open("header.txt").read()
        if self.stamps: hdr += "; stamps " + " ".join(self.stnames) + "\n"
        open(path, "w").write(hdr + a.text())
        n = 0
        import asmlib; asmlib._seen.clear()
        n += len(check_trace(ent + common + pa + tailc, "pathA"))
        n += len(check_trace(ent + common + pb + tailc, "pathB"))
        n += len(check_trace(ent + fold, "fold"))
        full = ent + common + pa + tailc
        stub = {s_[0][:-1]: s_ for s_ in self.stubs}
        for name in ("i0", "i1", "i2", "i15"):
            k = full.index(f"s_cbranch_vccnz L_stub_{name}"); e = full.index(f"L_back_{name}:")
            p = int(name[1:]) & 1
            n += len(check_trace(full[:k + 1] + stub[f"L_stub_{name}"] + rare[p] + full[e:e + 400], "rare" + name))
        k = full.index("s_cbranch_vccnz L_slowA")
        n += len(check_trace(full[:k + 1] + stub["L_slowA"] + full[full.index("L_redo:"):], "slowA"))
        k = full.index("s_cbranch_vccnz L_slowB")
        n += len(check_trace(full[:k + 1] + stub["L_slowB"] + full[k + 1:], "slowB"))
        import subprocess
        r = subprocess.run(["clang", "-x", "assembler", "-target", "amdgcn-amd-amdhsa", "-mcpu=gfx950", "-c", path, "-o", "x.o"], capture_output=True, text=True)
        print(path, "problems", n, "lines", len(a.lines), "asm", "ok" if r.returncode == 0 else r.stderr[:600])

ALLST = "x b1 g1 g2 b3 loop loopend B1 pub B1p B2 gelu B3 fin".split()
F1 = "karg xiss pretag x ln pubx b1 g1s0 g1s2 g1pre g1s5 g1s7 g1 g2s0 g2s3 ".split()
ALLST = "x b1 g1 g2 loop loopend B1 pub B1p B2 gelu conv B3 fin".split()
F3 = "x ln pubx b1 g1s2 g1s5 g1 b2 g2s2 g2s5 g2 b3 loop loopend".split()
if __name__ == "__main__":
    E = "exp/"
    Gen().build("standalone__conformer_family_branchformer__speech.s")
    Gen(stamps=ALLST).build(E + "k_st.s")
```

```python
import sys, struct
from asmlib import *

KN = "standalone__conformer_family_branchformer__speech_kernel"
MF = "v_mfma_f32_16x16x32_bf16"
FLAG_XA = 0x1000; FLAG_FOLD = 0x9000; FLAG_M = 0xa000; FLAG_XCH = 0x24000
XA = 1 << 20; M_F = 6 << 20; WU_F = M_F + 0x20000; WD_F = M_F + 0x40000; WV_F = M_F + 0x60000; DW_F = M_F + 0x80000
XCH = 8 << 20; WS_USED = 16 << 20; GP = 16 << 20; PLANE = 32000; TS_OFF = 100 << 20
GB = 24576
REG = 40960
def f2u(x): return struct.unpack("<I", struct.pack("<f", x))[0]
LOG2E = 1.4426950408889634
ALPHA = (LOG2E / 16) ** 0.5

pX, pWq, pWk, pWv, pWao, pWup, pDw, pWdn, pWm, pOut, pDbg, pWs = range(4, 28, 2)
sX, sWq, sWk, sWS, sXA, sOut = 28, 32, 36, 40, 44, 48
sUp, sGP = sWq, sWk
sGf = 83
sWave, sB, sHalf, sTown, sTag, sLds = 52, 53, 54, 55, 56, 57
sG = [58, 60]; sThi, sTlo, sN15, sTile, sT0, sMask, s4096, s16k = 62, 63, 64, 65, 66, 67, 68, 69
t0, t1, t2, t3 = 70, 71, 72, 73
sP0, sP1, sFirst, sRedo, sRet, sCnt, sWoff, sXo = 74, 75, 76, 77, 78, 80, 81, 82
STAMPS = list(range(84, 102, 2)) + [4, 6, 8, 10, 20, 22, 24, 26]
vLane, vK, vV, vD, vPoll, vT0, vL, vTS, vC, vF, vS = 1, 2, 3, [4, 5], 6, 7, 8, 12, 16, 32, [64, 96]
NF = 8
def Oreg(q, n): return ("v", 128 + 64 * q + 4 * n) if q < 2 else ("a", 128 + 64 * (q - 2) + 4 * n)
def R4(c, b): return f"{c}[{b}:{b+3}]"
def R2(c, b): return f"{c}[{b}:{b+1}]"
def srd(d, lo, hi, n): return [f"s_mov_b32 s{d}, {lo}", f"s_mov_b32 s{d+1}, {hi}", f"s_mov_b32 s{d+2}, {n}", f"s_mov_b32 s{d+3}, 0x20000"]
S = lambda d: f"s[{d}:{d+3}]"

class Gen:
    def __init__(self, stamps=False, D=4, order=3, thi=2.0**60, tlo=2.0**-60, pollstep=4, npre=2, nln=10, wqevery=6, wqskip=24, npub=4, nb1=(4, 4), nst6=2, flagstep=6, cyc=False, tlb=False, pfirst=True, pfq=True, touch=False, warm=False, xflag=28, pollissue=1, foldpf=True, amp=None, mflag=7, mpoll=34, mper=(1, 1, 2), xpoll=8, xcheck=56, pcheck=2, gsteps=(24, 25, 26, 27), xfirst=False):
        self.gsteps, self.xfirst = gsteps, xfirst
        self.pcheck = pcheck
        self.mflag, self.mpoll, self.mper, self.xpoll, self.xcheck = mflag, mpoll, mper, xpoll, xcheck
        self.amp = amp
        self.foldpf = foldpf
        self.pollissue = pollissue
        self.xflag = xflag
        self.warm = warm
        self.pfirst, self.pfq, self.touch = pfirst, pfq, touch
        self.tlb = tlb; self.wqevery = wqevery; self.wqskip, self.npub, self.nb1, self.nst6 = wqskip, npub, nb1, nst6
        self.npre, self.nln, self.flagstep, self.cyc = npre, nln, flagstep, cyc
        self.stamps, self.D, self.order, self.thi, self.tlo, self.pollstep = stamps, D, order, thi, tlo, pollstep
        self.nst = 0; self.stnames = []
        self.stubs = []
    def stamp(self, name):
        if not self.stamps or (name not in self.stamps and name not in ("start", "end")): return []
        if name in self.stnames: r = STAMPS[self.stnames.index(name)]
        else:
            r = STAMPS[self.nst]; self.nst += 1; self.stnames.append(name)
        return [f"s_mem{'' if self.cyc else 'real'}time s[{r}:{r+1}]"]

    def entry(self):
        L = []
        L += [f"s_cmp_ge_u32 s2, 256", "s_cbranch_scc1 L_end"]
        L += self.stamp("start")
        L += ["s_load_dwordx16 s[4:19], s[0:1], 0", "s_load_dwordx8 s[20:27], s[0:1], 64",
              "s_getpc_b64 s[70:71]", "L_pc:", "s_bfe_u32 s72, s2, 0x30003", "s_lshl_b32 s72, s72, 13", "v_lshrrev_b32 v19, 2, v0", "v_lshlrev_b32 v19, 7, v19",
              "v_add_u32 v17, s72, v19", "v_min_u32 v17, L_end-L_pc, v17", "global_load_dword v128, v17, s[70:71]",
              "v_lshrrev_b32 v2, 6, v0", f"v_and_b32 v{vLane}, 63, v0", f"v_readfirstlane_b32 s{sWave}, v2",
              f"v_and_b32 v8, 15, v{vLane}",
              f"v_lshrrev_b32 v9, 4, v{vLane}",
              f"v_bfe_u32 v10, v{vLane}, 4, 1", f"v_lshrrev_b32 v11, 5, v{vLane}",
              "v_lshl_add_u32 v10, v10, 1, v11",
              f"s_mul_i32 s{sLds}, s{sWave}, {REG}",
              f"s_mov_b32 s{sMask}, 0xffff0000", f"s_movk_i32 s{s4096}, 4096", f"s_movk_i32 s{s16k}, 16384",
              f"s_and_b32 s{sHalf}, s2, 1", f"s_bfe_u32 s{sB}, s2, 0x10001",
              f"s_lshr_b32 s{t0}, s2, 2", f"s_lshl_b32 s{t0}, s{t0}, 1", f"s_add_u32 s{sTown}, s{t0}, s{sHalf}",
              f"s_lshr_b32 s{t1}, s{sWave}, 1", f"s_xor_b32 s{t1}, s{t1}, 1", f"s_xor_b32 s{sTile}, s{sTown}, s{t1}",
              f"s_and_b32 s{t1}, s{sWave}, 1", f"s_lshl_b32 s{t2}, s{sTile}, 1", f"s_add_u32 s{t2}, s{t2}, s{t1}", f"s_lshl_b32 s{t2}, s{t2}, 13",
              f"v_xor_b32 v16, v{vLane}, v11", "v_lshlrev_b32 v13, 4, v16", f"v_add_u32 v144, s{t2}, v13"] + [f"v_xor_b32 v{144+p}, {p*32}, v144" for p in range(1, 8)] + [
              f"v_lshrrev_b32 v16, 3, v{vLane}", f"v_and_b32 v17, 7, v{vLane}", "v_and_b32 v18, 2, v16", "v_xor_b32 v17, v17, v18",
              "v_lshlrev_b32 v16, 10, v16", f"v_lshl_add_u32 v14, v17, 4, v16", f"s_lshl_b32 s{t3}, s{sWave}, 7", f"s_add_u32 s{t3}, s{t3}, 512",
              f"v_add_u32 v137, s{t3}, v14",
              f"s_lshl_b32 s{t3}, s{sWave}, 6", f"v_xor_b32 v16, s{t3}, v13", f"s_lshl_b32 s{t3}, s{sWave}, 12", f"v_add_u32 v16, s{t3}, v16",
              f"s_and_b32 s{t3}, s2, 7", f"s_lshl_b32 s{t3}, s{t3}, 14", f"v_add_u32 v164, s{t3}, v16", "v_xor_b32 v165, 32, v164",
              f"s_bfe_u32 s{t3}, s2, 0x30004", f"s_lshl_b32 s{t3}, s{t3}, 14", f"s_bfe_u32 s{t2}, s2, 0x10003", f"s_lshl_b32 s{t2}, s{t2}, 11", f"s_add_u32 s{t3}, s{t3}, s{t2}",
              f"v_add_u32 v188, s{t3}, v16", "v_xor_b32 v189, 32, v188",
              "s_waitcnt lgkmcnt(0)"] + self.stamp("karg") + [
              f"s_load_dword s{sTag}, s[{pWs}:{pWs+1}], 0"]
        if self.tlb:
            for ptr, off in ((pWq, 0), (pWk, 0), (pOut, 0), (pOut, 2 << 20)):
                L += [f"s_mov_b32 s{t0}, {off}", f"s_load_dword s83, s[{ptr}:{ptr+1}], s{t0}"]
            for k in range(1, 8): L += [f"s_mov_b32 s{t0}, {k << 21}", f"s_load_dword s83, s[{pWs}:{pWs+1}], s{t0}"]
        L += srd(sWS, f"s{pWs}", f"s{pWs+1}", 0x10000000 if self.stamps and not self.amp else WS_USED)
        L += ["s_cmp_ge_u32 s2, 252", "s_cbranch_scc1 L_fold"]
        return L
    def tagcalc(self):
        return [f"@need s{sTag}", f"s_mul_i32 s{sTag}, s{sTag}, 1664525", f"s_add_u32 s{sTag}, s{sTag}, 1013904223"]

    def dma(self, G, NT=16):
        if G >= NT * 16: return [], [], []
        slot = (G % 40) * 1024; h = (G >> 3) & 1; jj = (G >> 2) & 1
        pre = [f"s_add_u32 m0, s{sLds}, {slot + 4096}"] if G % 8 == 0 else []
        ld = [f"global_load_lds_dwordx4 v{vD[jj]}, s[{sG[h]}:{sG[h]+1}] offset:{(G%8)*1024 - 4096} sc1 ;#p{G}"]
        post = [f"s_add_u32 s{sG[h]}, s{sG[h]}, 16384", f"s_addc_u32 s{sG[h]+1}, s{sG[h]+1}, 0"] if G % 8 == 7 else []
        return pre, ld, post
    def front(self):
        L = []
        vSt, vWa, vWb = 26, 27, 28
        vTr = [2, 3, 4, 5]; vAbs = [8, 9, 10, 11]; vR = [12, 13, 14, 15]
        DM = 12
        MI, STF = 26624, 31744
        sMo, sMf = sP0, sP1
        mi = [f"s_add_u32 m0, s{sLds}, {MI}", "s_nop 0"] + [f"global_load_lds_dwordx4 v{164+(i&1)}, s[{pWq}:{pWq+1}] offset:{i*1024} ;#mi" for i in range(4)]
        mi += [f"s_add_u32 m0, s{sLds}, {MI+4096}", "s_nop 0"] + [f"global_load_lds_dwordx4 v{188+i}, s[{pWk}:{pWk+1}] offset:{i*1024} ;#mi" for i in range(2)]
        xl = [f"s_mul_i32 s{t0}, s{sB}, 2048000", f"s_add_u32 s{sX}, s{pX}, s{t0}", f"s_addc_u32 s{sX+1}, s{pX+1}, 0", f"s_mov_b32 s{sX+2}, 2048000", f"s_mov_b32 s{sX+3}, 0x20000"]
        for i in range(8):
            if i % 4 == 0: xl += [f"s_add_u32 m0, s{sLds}, {32768 + i*1024}", "s_nop 0"]
            xl.append(f"buffer_load_dwordx4 v{144+i}, {S(sX)}, {'s%d' % s4096 if i >= 4 else '0'} offen offset:{(i&3)*1024} lds ;#x")
        L += xl + mi if self.xfirst else mi + xl
        L += self.stamp("xiss")
        L += srd(sUp, f"s{pWup}", f"s{pWup+1}", 262144)
        L += ["s_bfe_u32 s73, s2, 0x40003", "s_lshl_b32 s73, s73, 14", "v_lshrrev_b32 v16, 9, v19", "v_lshl_add_u32 v16, v16, 9, v19",
              f"buffer_load_dword v130, v16, {S(sUp)}, s73 offen offset:512"]
        vQ4 = [137, 132, 133, 134]
        L += ["v_add_u32 v132, 7168, v137", "v_xor_b32 v16, 64, v137", "v_add_u32 v133, 14336, v16", "v_add_u32 v134, 21504, v16"]
        def wq2(p):
            pre = [f"s_add_u32 m0, s{sLds}, {p*1024}", f"s_mov_b32 s{sWoff}, {p*8192}"] if p % 4 == 0 else []
            return pre, [f"buffer_load_dwordx4 v{vQ4[p & 3]}, {S(sUp)}, s{sWoff} offen offset:{(p&3)*1024} lds ;#wq{p}"]
        def wq(p): return wq2(p)[0] + wq2(p)[1]
        NPRE = self.npre
        alu = []
        alu += [f"s_mul_i32 s{t0}, s{sB}, 2048000", f"s_add_u32 s{sOut}, s{pOut}, s{t0}", f"s_addc_u32 s{sOut+1}, s{pOut+1}, 0",
              f"s_mov_b32 s{sOut+2}, 2048000", f"s_mov_b32 s{sOut+3}, 0x20000",
              f"s_add_u32 s{t0}, s{t0}, {XA}", f"s_add_u32 s{sXA}, s{pWs}, s{t0}", f"s_addc_u32 s{sXA+1}, s{pWs+1}, 0",
              f"s_mov_b32 s{sXA+2}, 2048000", f"s_mov_b32 s{sXA+3}, 0x20000", "|",
              f"s_mul_i32 s{sT0}, s{sHalf}, 63", f"s_lshl_b32 s{t0}, s{sWave}, 4", f"s_add_u32 s{sT0}, s{sT0}, s{t0}",
              f"s_add_u32 s{t0}, s{sWave}, s{sHalf}", f"s_cmp_ge_u32 s{t0}, 3", f"s_cselect_b32 s{sN15}, 1, 0",
              f"s_cmp_eq_u32 s{t0}, 4", f"s_cselect_b32 s{t0}, 1, 0", f"s_sub_u32 s{sT0}, s{sT0}, s{t0}", "|",
              f"s_lshl_b32 s{t0}, s{sT0}, 14", f"s_lshr_b32 s{t1}, s{sWave}, 1", f"s_lshl_b32 s{t1}, s{t1}, 13",
              f"s_add_u32 s{t2}, s{t0}, s{t1}", f"s_add_u32 s{sG[0]}, s{sXA}, s{t2}", f"s_addc_u32 s{sG[0]+1}, s{sXA+1}, 0",
              f"s_xor_b32 s{t2}, s{t2}, 8192", f"s_add_u32 s{sG[1]}, s{sXA}, s{t2}", f"s_addc_u32 s{sG[1]+1}, s{sXA+1}, 0", "|",
              f"s_mov_b32 s{sThi}, {f2u(self.thi):#x}", f"s_mov_b32 s{sTlo}, {f2u(self.tlo):#x}", f"s_mov_b32 s{sRedo}, 0",
              ] + [x for r in range(4) for x in (f"s_mov_b32 s{DM+2*r}, {(0x100001 << r):#x}", f"s_mov_b32 s{DM+2*r+1}, {(0x10000100 << r):#x}")]
        alu += [f"v_lshlrev_b32 v16, 3, v11", "v_xor_b32 v16, v8, v16", "v_lshlrev_b32 v16, 4, v16", "v_lshl_add_u32 v29, v10, 9, v16", "|",
              f"s_and_b32 s{t1}, s{sWave}, 1", f"s_lshl_b32 s{t1}, s{t1}, 8", f"s_lshl_b32 s{t2}, s{sTile}, 14", f"s_add_u32 s{t1}, s{t1}, s{t2}",
              f"s_lshl_b32 s{t2}, s{sHalf}, 13", f"s_add_u32 s{t1}, s{t1}, s{t2}", f"v_add_u32 v{vSt}, s{t1}, v29", "|",
              f"s_lshl_b32 s{t2}, s{sHalf}, 12", f"s_add_u32 s{t2}, s{t2}, s{sLds}", f"s_add_u32 s{t2}, s{t2}, 32768",
              f"v_lshlrev_b32 v30, 4, v{vLane}", f"v_add_u32 v{vWa}, s{t2}, v30", f"v_xor_b32 v{vWb}, 4096, v{vWa}", "|",
              "v_xor_b32 v16, v10, v8", "v_lshlrev_b32 v16, 4, v16", "v_lshl_add_u32 v16, v8, 9, v16", f"s_lshl_b32 s{t2}, s{sHalf}, 8", f"s_add_u32 s{t2}, s{t2}, s{sLds}",
              f"v_add_u32 v152, s{t2}, v16"] + [f"v_xor_b32 v{152+p}, {p*64}, v152" for p in range(1, 8)] + ["|"]
        alu += ["v_lshrrev_b32 v16, 3, v8", "v_and_b32 v18, 2, v10", "v_or_b32 v16, v16, v18", "v_lshlrev_b32 v16, 5, v16",
              "v_bfe_u32 v18, v8, 1, 1", "v_lshl_add_u32 v16, v18, 4, v16", "v_and_b32 v18, 1, v8", "v_lshl_add_u32 v16, v18, 3, v16", "|",
              "v_lshrrev_b32 v18, 2, v8", "v_lshl_add_u32 v16, v18, 7, v16", "v_lshl_add_u32 v16, v10, 10, v16",
              f"v_add_u32 v{vTr[0]}, s{sLds}, v16"] + [f"v_xor_b32 v{vTr[e]}, {e*32}, v{vTr[0]}" for e in (1, 2, 3)] + ["|"]
        alu += [
              "v_bfe_u32 v16, v8, 2, 1", "v_bfe_u32 v17, v8, 3, 1", "v_lshl_add_u32 v16, v16, 1, v17", "v_and_b32 v17, 3, v8",
              "v_lshl_add_u32 v18, v16, 2, v17", "v_xor_b32 v18, v18, v9", "v_lshlrev_b32 v18, 4, v18", "v_lshl_add_u32 v18, v17, 9, v18",
              f"v_mul_u32_u24 v16, {REG}, v16", "v_add_u32 v160, v16, v18"] + [f"v_xor_b32 v{160+p}, {p*64}, v160" for p in range(1, 4)] + [
              f"s_bfe_u32 s{t0}, s2, 0x20005", f"s_lshl_b32 s{t0}, s{t0}, 3", f"s_and_b32 s{t1}, s2, 7", f"s_add_u32 s{t0}, s{t0}, s{t1}", f"s_bfe_u32 s{t1}, s2, 0x20003",
              f"s_lshl_b32 s{t2}, s{t0}, 2", f"s_add_u32 s{t2}, s{t2}, s{t1}", f"s_lshl_b32 s{t2}, s{t2}, 10", f"s_add_u32 s{sMo}, s{t2}, {M_F}",
              f"s_lshl_b32 s{t2}, s{t0}, 5", f"s_add_u32 s{t2}, s{t2}, s{t1}", f"s_lshl_b32 s{t2}, s{t2}, 2", f"s_add_u32 s{sMf}, s{t2}, {FLAG_M}",
              f"s_lshl_b32 s{t2}, s{sWave}, 28", f"s_add_u32 s{sMo}, s{sMo}, s{t2}", f"s_add_u32 s{sMf}, s{sMf}, s{t2}",
              f"v_bfe_u32 v16, v{vLane}, 2, 3", f"v_and_b32 v17, 3, v{vLane}", "v_lshl_add_u32 v16, v16, 5, v17", "v_lshlrev_b32 v16, 2, v16",
              f"s_lshl_b32 s{t2}, s{sWave}, 10", f"s_add_u32 s{t2}, s{t2}, {FLAG_M}", f"v_add_u32 v166, s{t2}, v16",
              f"s_mul_i32 s{t0}, s{sB}, {64*PLANE}", f"s_add_u32 s{t0}, s{t0}, {GP}", f"s_add_u32 s{sGP}, s{pWs}, s{t0}", f"s_addc_u32 s{sGP+1}, s{pWs+1}, 0",
              f"s_mov_b32 s{sGP+2}, {64*PLANE}", f"s_mov_b32 s{sGP+3}, 0x20000",
              f"s_mul_i32 s{t0}, s{sWave}, {16*PLANE}", f"s_lshl_b32 s{t1}, s{sTown}, 8", f"s_add_u32 s{t0}, s{t0}, s{t1}",
              f"s_cmp_gt_u32 s{sTown}, 124", f"s_cselect_b32 s{t0}, 0x40000000, s{t0}",
              f"v_mul_u32_u24 v16, {PLANE}, v9", "v_lshl_add_u32 v16, v8, 4, v16", f"v_add_u32 v167, s{t0}, v16",
              "v_lshrrev_b32 v16, 3, v8", f"v_mul_u32_u24 v16, {REG - 256}, v16", "v_lshl_add_u32 v16, v8, 5, v16", "v_lshl_add_u32 v16, v9, 8, v16", f"v_add_u32 v186, {2*REG}, v16",
              f"s_lshl_b32 s{t2}, s{sB}, 7", f"s_add_u32 s{t2}, s{t2}, s{sTown}", f"s_lshl_b32 s{t2}, s{t2}, 5", f"s_add_u32 s{t2}, s{t2}, s{sWave}",
              f"s_lshl_b32 s{t2}, s{t2}, 2", f"s_add_u32 s{sGf}, s{t2}, {FLAG_XA + 16}",
              f"v_lshrrev_b32 v16, 2, v{vLane}", f"s_sub_u32 s{t2}, 15, s{sN15}", f"v_min_u32 v16, s{t2}, v16",
              f"s_lshl_b32 s{t2}, s{sB}, 7", f"s_add_u32 s{t2}, s{t2}, s{sT0}", f"v_add_u32 v16, s{t2}, v16", "|",
              f"v_and_b32 v18, 3, v{vLane}", "v_lshl_add_u32 v16, v16, 5, v18", "v_lshlrev_b32 v16, 2, v16", f"v_add_u32 v{vPoll}, {FLAG_XA}, v16",
              "|",
              f"s_lshl_b32 s{t2}, s{sB}, 7", f"s_add_u32 s{t2}, s{t2}, s{sTile}", f"s_lshl_b32 s{t2}, s{t2}, 5",
              f"s_and_b32 s{t1}, s{sWave}, 1", f"s_lshl_b32 s{t1}, s{t1}, 1", f"s_add_u32 s{t2}, s{t2}, s{t1}", f"s_add_u32 s{t2}, s{t2}, s{sHalf}",
              f"s_lshl_b32 s{t2}, s{t2}, 2", f"s_add_u32 s{sXo}, s{t2}, {FLAG_XA}", "|"]
        alu += [f"v_add_u32 v{vAbs[j]}, {j*REG}, v30" for j in range(4)] + [f"v_mov_b32 v{20+r}, 0x3f803f80" for r in range(4)]
        for j in range(4): alu += [f"s_xor_b32 s{t1}, s{sWave}, {j}", f"s_mul_i32 s{t1}, s{t1}, {REG}", f"v_add_u32 v{vR[j]}, s{t1}, v30"]
        alu += [f"v_lshlrev_b32 v16, 3, v{vLane}"] + [f"v_sub_u32 v{180+j}, v{vR[j]}, v16" for j in range(4)]
        L += [x for x in alu if x != "|"]
        rest = list(range(32))
        for p in range(NPRE): L += wq(rest.pop(0))
        L += self.tagcalc() + [f"v_mov_b32 v7, s{sTag}", "s_mov_b32 vcc_lo, 0xf0000f", "s_mov_b32 vcc_hi, 0xf0000f00"]
        L += ["@vm mi"] + self.stamp("mi") + ["s_barrier"] + self.stamp("b0")
        mrd = lambda ks: [f"ds_read_b128 {R4('a', 12*ks+4*k)}, v{160+(ks&3)} offset:{MI + k*2048 + (ks>>2)*256}" for k in range(3)]
        L += [x for ks in range(4) for x in mrd(ks)]
        for ks in range(8):
            for hb in range(2):
                L.append(f"{MF} {R4('v', 168+4*hb)}, {R4('a', 12*ks+4*hb)}, {R4('a', 12*ks+8)}, {R4('v', 168+4*hb) if ks else '0'}")
            if ks < 4: L += mrd(ks + 4)
        L += ["@vm x"] + self.stamp("x")
        L += [f"ds_read_b128 {R4('v', 32+4*i)}, v{152+i} offset:32768" for i in range(8)]
        L += [f"v_cvt_pk_bf16_f32 v{176+k}, v{168+2*k}, v{169+2*k}" for k in range(4)]
        L += [f"buffer_store_dwordx4 v[176:179], v30, {S(sWS)}, s{sMo} offen sc1 ;#mst"] + self.stamp("mst")
        ln = []
        for i in range(8):
            X = R4("v", 32 + 4 * i)
            un = []
            for r in range(4):
                x = 32 + 4 * i + r; d = 64 + 8 * i + 2 * r
                un += [f"v_lshlrev_b32 v{d}, 16, v{x}", f"v_and_b32 v{d+1}, s{sMask}, v{x}"]
            a_ = f"{MF} v[140:143], {X}, {X}, {'0' if i == 0 else 'v[140:143]'}"; b_ = f"{MF} v[16:19], v[20:23], {X}, {'0' if i == 0 else 'v[16:19]'}"
            ln += [a_, b_] + un if i == 7 else [a_] + un[:4] + [b_] + un[4:]
        ln += [f"v_cndmask_b32 v18, v141, v140, s[{DM}:{DM+1}]", f"v_cndmask_b32 v18, v18, v142, s[{DM+4}:{DM+5}]", f"v_cndmask_b32 v18, v18, v143, s[{DM+6}:{DM+7}]",
               f"v_cndmask_b32 v18, 0, v18, vcc", f"v_mul_f32 v16, {f2u(-1/256):#x}, v16", "v_mov_b32 v19, v18", f"v_mul_f32 v17, {f2u(16.0):#x}, v16",
               "v_mul_f32 v17, v17, v17", "v_permlane32_swap_b32 v19, v18", "v_add_f32 v18, v18, v19", "v_mov_b32 v19, v18", f"v_mov_b32 v20, {f2u(1e-5 / ALPHA**2):#x}", "s_nop 0",
               "v_permlane16_swap_b32 v19, v18", "v_add_f32 v18, v18, v19", "v_sub_f32 v18, v18, v17", "v_max_f32 v18, 0, v18",
               f"v_fmamk_f32 v18, v18, {f2u(1/256 / ALPHA**2):#x}, v20", "v_rsq_f32 v18, v18", "s_nop 0", "v_mul_f32 v19, v16, v18"]
        pub = []
        for i in range(8):
            for r in range(4):
                d = 64 + 8 * i + 2 * r
                pub.append(f"v_pk_fma_f32 {R2('v', d)}, {R2('v', d)}, v[18:19], v[18:19] op_sel:[0,0,1] op_sel_hi:[1,0,1]")
            for r in range(4):
                d = 64 + 8 * i + 2 * r
                pub.append(f"v_cvt_pk_bf16_f32 v{32+4*i+r}, v{d}, v{d+1}")
            if i < 4: pub.append(f"buffer_store_dwordx4 {R4('v', 32+4*i)}, v{vSt}, {S(sXA)}, {'s%d' % s4096 if i >= 2 else '0'} offen offset:{(i&1)*2048} sc1 ;#xast")
            pub.append(f"ds_write_b128 v{vWa if i < 4 else vWb}, {R4('v', 32+4*i)} offset:{(i&3)*1024}")
        out = []; k = -self.wqskip; n1 = self.nln
        for x in ln:
            out.append(x); k += 1
            if k >= self.wqevery and n1 and x.startswith("v_") and not x.startswith(("v_mfma", "v_rsq")): out += wq(rest.pop(0)); k = 0; n1 -= 1
        out += self.stamp("ln")
        n2 = self.npub; nw = 0
        for x in pub:
            out.append(x)
            if x.startswith("ds_write"):
                nw += 1
                if nw == self.mflag: out += ["@vm mst"] + self.flagstore(7, sMf, True)
                if nw > 4 and n2: out += wq(rest.pop(0)); n2 -= 1
        L += out + self.stamp("pubx")
        Breg = lambda s, qb: 128 + (s * 4 + qb) * 4
        bread = lambda s, qb: f"ds_read_b128 {R4('a', Breg(s, qb))}, v{vAbs[qb]} offset:{32768 + s*1024}"
        Areg = lambda s, e: 64 + 16 * (s % 3) + 4 * e
        gacc = lambda eb, rb: 192 + (rb * 4 + eb) * 4
        def ga(s): return [[f"ds_read_b64_tr_b16 {R2('v', Areg(s, eb)+2*j)}, v{vTr[eb]} offset:{s*4096 + j*512}" for j in range(2)] for eb in range(4)]
        L += ["@vm wq7"] + [x for s_ in range(2) for y in ga(s_) for x in y]
        for _ in range(self.nb1[0]):
            assert rest[0] < 26; L += wq(rest.pop(0))
        Greg = lambda s, rb: 32 + 8 * (s % 3) + 4 * rb
        gread = lambda s, rb: f"ds_read_b128 {R4('v', Greg(s, rb))}, v186 offset:{32768 + s*1024 + rb*16}"
        L += ["@lg0", "s_barrier"] + self.stamp("b1") + [gread(s_, rb) for s_ in range(2) for rb in range(2)]
        for _ in range(self.nb1[1]): L += wq(rest.pop(0))
        mf = []; gaps = [[] for _ in range(64)]
        for s in range(8):
            for eb in range(4):
                for rb in range(2):
                    mf.append(f"{MF} {R4('v', gacc(eb, rb))}, {R4('v', Areg(s, eb))}, {R4('v', Greg(s, rb))}, {R4('v', gacc(eb, rb)) if s else '0'}")
            g = 8 * s
            for pos in (2, 6):
                if rest:
                    pre, ld = wq2(rest.pop(0)); gaps[g + pos - 1] += pre; gaps[g + pos] += ld
            if s < 6:
                assert not rest or rest[0] > 4 * s + 11 + 2, (s, rest)
                r = ga(s + 2); gaps[g].append(f"@vm wq{4*s+11}")
                for n, pos in enumerate((0, 3, 4, 5)): gaps[g + pos] += r[n]
                gaps[g + 1] += [gread(s + 2, 0), gread(s + 2, 1)]
            if s < 7: gaps[g + 7].append(f"@need v[{Areg(s+1,0)}:{Areg(s+1,0)+15}] v[{Greg(s+1,0)}:{Greg(s+1,0)+7}]")
            if s == self.flagstep: gaps[g + 7] += ["@vm xast"] + self.flagstore(7, sXo)
        assert not rest
        gaps[self.mpoll].append(f"buffer_load_dword v25, v166, {S(sWS)}, 0 offen sc1")
        c0 = -2 * 0.7978845608028654 * LOG2E / ALPHA; c1 = c0 * 0.044715 / ALPHA ** 2
        gaps[56] += [f"s_lshl_b32 s{sWoff}, s{sWave}, 15", f"v_mov_b32 v16, {f2u(c0):#x}", f"v_mov_b32 v17, {f2u(c1):#x}"]
        gaps[57] += [f"s_add_u32 s{sWoff}, s{sWoff}, {M_F}"]
        bq = [bread(s_, qb) for s_ in range(8) for qb in range(4)]
        for g in (48, 49, 51, 52, 59, 60, 61, 62):
            gaps[g] += bq[:2]; bq = bq[2:]
        L += weave(mf, gaps) + self.stamp("gg")
        L += ["@need v25", f"v_cmp_ne_u32 vcc, s{sTag}, v25", "s_cbranch_vccnz L_spin_m", "L_back_m:"] + self.stamp("mseen")
        self.stubs.append(self.spin("m", 166, 25))
        mq = [self.wload("a", 4 * n, n, 30) for n in range(32)]
        def mnext(n):
            o = []
            for _ in range(n):
                if mq: ld, post = mq.pop(0); o += ld + post
            return o
        def ex_g(k, d):
            o = mnext(self.mper[k]) + bq[:2]; del bq[:2]
            if k == 2:
                rb = (d - 192) // 16; sA, qA = R2("v", 232 + 2 * rb), R2("v", 236 + 2 * rb)
                X = [R2("v", d + 2 * k_) for k_ in range(4)]
                if (d - 192) % 16 == 0:
                    st = [f"v_pk_add_f32 {sA}, {X[0]}, {X[1]}", f"v_pk_mul_f32 {qA}, {X[0]}, {X[0]}", f"v_pk_add_f32 v[240:241], {X[2]}, {X[3]}", f"v_pk_mul_f32 v[242:243], {X[1]}, {X[1]}",
                          f"v_pk_fma_f32 {qA}, {X[2]}, {X[2]}, {qA}", f"v_pk_fma_f32 v[242:243], {X[3]}, {X[3]}, v[242:243]"]
                else:
                    st = [f"v_pk_add_f32 {sA}, {sA}, {X[0]}", f"v_pk_fma_f32 {qA}, {X[0]}, {X[0]}, {qA}", f"v_pk_add_f32 v[240:241], v[240:241], {X[1]}", f"v_pk_fma_f32 v[242:243], {X[1]}, {X[1]}, v[242:243]",
                          f"v_pk_add_f32 {sA}, {sA}, {X[2]}", f"v_pk_fma_f32 {qA}, {X[2]}, {X[2]}, {qA}", f"v_pk_add_f32 v[240:241], v[240:241], {X[3]}", f"v_pk_fma_f32 v[242:243], {X[3]}, {X[3]}, v[242:243]",
                          f"v_pk_add_f32 {sA}, {sA}, v[240:241]", f"v_pk_add_f32 {qA}, {qA}, v[242:243]"]
                o = st + o
            return o
        L += mnext(3) + self.gelu([192 + 8 * n for n in range(4)], ex_g, 224, 16) + self.stamp("gelu1")
        M = lambda s, e, qb: f"{MF} {R4('v', 64+(e*4+qb)*4)}, {R4('a', 16*s+4*e)}, {R4('a', Breg(s, qb))}, {R4('v', 64+(e*4+qb)*4) if s else '0'}"
        mf = [M(s, e, qb) for s in range(6) for e in range(4) for qb in range(4)]
        mf += [M(s, 2 * p + hb, qb) for p in range(2) for qb in range(4) for hb in range(2) for s in (6, 7)]
        gaps = [[] for _ in range(128)]
        assert not bq
        gst = [f"buffer_store_dwordx4 {R4('v', 240+4*eb)}, v0, {S(sGP)}, {('0', 's%d' % DM, 's%d' % (DM+2), 's%d' % (DM+1))[eb]} offen sc1 ;#gst" for eb in range(4)]
        L += [f"s_mov_b32 s{DM+k}, {4*PLANE*(k+1)}" for k in range(3)]
        L += [f"s_and_b32 s{t3}, s{sWave}, 1", f"s_lshl_b32 s{t3}, s{t3}, 12", f"s_add_u32 s{t2}, s{t3}, 4096", f"s_xor_b32 s{t3}, s{t3}, 4096"]
        self.G = 0; polled = 0
        for s in range(8):
            g = 16 * s
            if s < 6: gaps[g + 15].append(f"@need a[{16*(s+1)}:{16*(s+1) + (15 if s < 5 else 31)}]")
            for n in range(4 if s < 6 else (self.nst6 if s == 6 else 0)):
                gg = g + 4 * n
                if gg == self.xpoll: gaps[gg + 2].append(f"buffer_load_dword v7, v{vPoll}, {S(sWS)}, 0 offen sc1")
                elif mq:
                    ld, post = mq.pop(0); gaps[gg + 2] += ld; gaps[gg + 3] += post
                elif gg >= self.xcheck:
                    pre, ld, post = self.dma(self.G); self.G += 1
                    gaps[gg + 1] += pre; gaps[gg + 2] += ld; gaps[gg + 3] += post
            gaps[g + 13] += self.stamp(f"g2s{s}")
        gaps[self.xcheck - 3] += ["@need v7", f"v_cmp_ne_u32 vcc, s{sTag}, v7"]
        gaps[self.xcheck - 1] += ["s_cbranch_vccnz L_spin_xa", "L_back_xa:"]
        self.stubs.append(self.spin("xa", vPoll, 7))
        st1 = ["v_add_f32 v232, v232, v233", "v_add_f32 v236, v236, v237", "v_add_f32 v234, v234, v235", "v_add_f32 v238, v238, v239",
               "v_permlane32_swap_b32 v232, v236", "v_permlane32_swap_b32 v234, v238", "v_add_f32 v232, v232, v236", "v_add_f32 v234, v234, v238", "s_nop 0",
               "v_permlane16_swap_b32 v232, v234", "v_add_f32 v232, v232, v234", f"ds_write_b32 v180, v232 offset:{STF}"]
        spread(gaps, st1, list(range(0, 13)))
        gaps[16] += ["@lg0", "s_barrier"]
        gaps[17] += [f"ds_read_b32 v{232+j}, v{180+j} offset:{STF}" for j in (1, 2)]; gaps[19] += [f"ds_read_b32 v235, v183 offset:{STF}"]
        adr = [f"v_add_u32 v{vK}, s{sLds}, v29",
              f"v_lshrrev_b32 v16, 2, v{vLane}", f"v_bfe_u32 v17, v{vLane}, 1, 1", "v_lshlrev_b32 v18, 3, v17", "v_xor_b32 v16, v16, v18",
              "v_lshlrev_b32 v16, 4, v16", "v_lshl_add_u32 v16, v17, 9, v16", f"v_and_b32 v17, 1, v{vLane}", "v_lshl_add_u32 v16, v17, 3, v16",
              f"v_add_u32 v{vV}, s{sLds}, v16", f"v_add_u32 v{vD[0]}, s{t2}, v30", f"v_add_u32 v{vD[1]}, s{t3}, v30"]
        spread(gaps, adr, list(range(19, 29)))
        st2 = ["v_add_f32 v232, v232, v233", "v_add_f32 v234, v234, v235", "v_add_f32 v232, v232, v234", f"v_mul_f32 v232, {f2u(1/256):#x}, v232",
               "v_mov_b32 v233, v232", "s_nop 0", "v_permlane32_swap_b32 v232, v233",
               "v_fma_f32 v233, -v232, v232, v233", "v_max_f32 v233, 0, v233", f"v_add_f32 v233, {f2u(1e-5 * ALPHA**2):#x}, v233", "v_rsq_f32 v233, v233",
               "v_mul_f32 v232, v232, v233", "v_mov_b32 v235, v233", "v_mov_b32 v234, v232", "s_nop 0",
               "v_permlane16_swap_b32 v233, v235", "v_permlane16_swap_b32 v232, v234"]
        st2 += [f"v_fma_f32 v{gacc(eb, rb)+r}, v{gacc(eb, rb)+r}, v{233+2*rb}, -v{232+2*rb}" for rb in range(2) for eb in range(4) for r in range(4)]
        st2 += [f"v_cvt_pk_bf16_f32 v{240+4*eb+r}, v{gacc(eb, 0)+r}, v{gacc(eb, 1)+r}" for eb in range(4) for r in range(4)]
        st2 += [f"v_mov_b32 v{r}, 0" for r in list(range(vC, vC + 14)) + [vC + 15] + list(range(vL, vL + 4))]
        gaps[29].append("@need v[233:235]")
        spread(gaps, st2, list(range(29, 96)))
        left = []
        gaps[99].append("s_nop 0"); gaps[100].append("s_nop 1")
        for k in range(8):
            p, qb = k >> 2, k & 3; t = 32 + 4 * k; g = 96 + 4 * k + 5
            cv2 = lambda e, t_: [f"v_cvt_pk_bf16_f32 v{t_}, v{64+(e*4+qb)*4}, v{65+(e*4+qb)*4}", f"v_cvt_pk_bf16_f32 v{t_+1}, v{66+(e*4+qb)*4}, v{67+(e*4+qb)*4}"]
            for gg, ins in ((g, cv2(2 * p, t)), (g + 2, cv2(2 * p + 1, t + 2)), (g + 3, [f"ds_write_b128 v{vR[0]}, {R4('v', t)} offset:{32768 + (qb*2+p)*1024}"])):
                if gg < 128: gaps[gg] += ins
                else: left += ins
        self.gst = gst
        L += weave(mf, gaps) + ["s_nop 2"] + left + [f"v_mov_b32 v{vC+14}, 0", "v_mov_b32 v0, v167"]
        L += self.stamp("g2")
        G = self.G
        print("   ring pieces before g2", G)
        D = self.D
        for n in range(2):
            pre, ld, post = self.dma(G); G += 1
            L += pre + (["s_nop 0"] if pre else []) + ld + post
        L += self.stamp("qpw") + ["@vm p3"] + self.stamp("p3") + [x for n in range(4) for x in self.kread(0, n, n)]
        L += ["@lg0", "s_barrier"] + self.stamp("b3")
        def qread(s): return [f"ds_read_b128 {R4('a', 32*qb+4*s)}, v{vR[s>>1]} offset:{32768 + (qb*2+(s&1))*1024}" for qb in range(4)]
        L += qread(0) + qread(1)
        for n in range(2):
            pre, ld, post = self.dma(G); G += 1
            L += pre + (["s_nop 0"] if pre else []) + ld + post
        mf = []; gaps = [[] for _ in range(64)]
        for n in range(16): mf += self.qk(n, n % NF, 0)
        mf = self.reorder(mf, self.order & 1)
        for st in range(16):
            g = 4 * st; i = st + D
            t, n = (0, i) if i < 16 else (1, i - 16)
            if n % 2 == 0: gaps[g].append(f"@vm p{t*16+n+1}")
            gaps[g] += self.kread(t, n, i % NF)
            if st % 2 == 0 and st // 2 + 2 < 8:
                qq = qread(st // 2 + 2); gaps[g + 1] += qq[:2]; gaps[g + 5] += qq[2:]
            if G < 32:
                pre, ld, post = self.dma(G); G += 1
                gaps[g + 1] += pre; gaps[g + 2] += ld; gaps[g + 3] += post
            if st % 2 == 1:
                nx = st + 1
                need = f"@need v[{vF+4*(nx%NF)}:{vF+4*(nx%NF)+7}]"
                if nx < 16: need += "".join(f" {R4('a', 32*qb+4*(nx//2))}" for qb in range(4))
                gaps[g + 3].append(need)
        gaps[62].append("s_barrier")
        L += weave(mf, gaps)
        print('   ring pieces issued before loop', G)
        assert G >= 24
        self.G = G; self.nhead = 0
        return L

    def wload(self, c, reg, n, va=0):
        ld = [f"buffer_load_dwordx4 {R4(c, reg)}, v{va}, {S(sWS)}, s{sWoff} offen offset:{(n&3)*1024} sc1"]
        post = [f"s_add_u32 s{sWoff}, s{sWoff}, {4096 if n & 31 != 31 else 4096 + 0x20000 - 0x8000}"] if n & 3 == 3 else []
        return ld, post

    def gelu(self, regs, extra, ty, vc, va=None):
        o = []
        for d in regs:
            X = [R2("v", d + 2 * k) for k in range(4)]; Y = [R2("v", ty + 2 * k) for k in range(4)]
            o += [f"v_pk_mul_f32 {y}, {x}, {x}" for x, y in zip(X, Y)]
            o += [f"v_pk_fma_f32 {y}, {y}, {R2('v', vc)}, {R2('v', vc)} op_sel:[0,1,0] op_sel_hi:[1,1,0]" for y in Y]
            o += [f"v_pk_mul_f32 {y}, {y}, {x}" for x, y in zip(X, Y)]
            o += extra(0, d) + [f"v_exp_f32 v{ty+k}, v{ty+k}" for k in range(8)]
            if va is None: o += [f"v_pk_add_f32 {y}, {y}, 1.0 op_sel_hi:[1,0]" for y in Y]
            else: o += [f"v_pk_fma_f32 {y}, {y}, {R2('v', va)}, {R2('v', va)} op_sel_hi:[1,0,0]" for y in Y]
            o += extra(1, d) + [f"v_rcp_f32 v{ty+k}, v{ty+k}" for k in range(8)]
            o += [f"v_pk_mul_f32 {x}, {x}, {y}" for x, y in zip(X, Y)] + extra(2, d)
        return o

    def flagstore(self, vdata, soff, plain=False):
        if plain: return ["s_mov_b64 exec, 1", f"buffer_store_dword v{vdata}, off, {S(sWS)}, s{soff} sc1", "s_mov_b64 exec, -1"]
        return [f"s_mov_b64 exec, 1 ;!\nbuffer_store_dword v{vdata}, off, {S(sWS)}, s{soff} sc1\ns_mov_b64 exec, -1"]

    def spin(self, name, vaddr, vdst):
        return [f"L_spin_{name}:", f"s_mov_b32 s{sCnt}, 0", f"L_spinl_{name}:", "s_sleep 1",
                f"buffer_load_dword v{vdst}, v{vaddr}, {S(sWS)}, 0 offen sc1", f"s_add_u32 s{sCnt}, s{sCnt}, 1",
                f"s_cmp_gt_u32 s{sCnt}, 0x10000", "s_waitcnt vmcnt(0)", f"s_cbranch_scc1 L_back_{name}",
                f"v_cmp_ne_u32 vcc, s{sTag}, v{vdst}", f"s_cbranch_vccnz L_spinl_{name}", f"s_branch L_back_{name}"]

    def F(self, f): return R4("v", vF + 4 * f)
    def kread(self, t, n, f):
        s, kb = n >> 1, n & 1
        return [f"ds_read_b128 {self.F(f)}, v{vK} offset:{((t*16 + 2*s) % 40)*1024 + kb*256}"]
    def vread(self, t, n, f):
        return [f"ds_read_b64_tr_b16 {R2('v', vF+4*f+2*j)}, v{vV} offset:{((t*16+n) % 40)*1024 + j*256}" for j in range(2)]
    def qk(self, n, f, buf, czero=False):
        s, kb = n >> 1, n & 1; o = []
        for q in range(4):
            d = vS[buf] + 8 * q + 4 * kb
            C = R4("v", d) if s else ("0" if czero else R4("v", vC + 4 * q))
            o.append(f"{MF} {R4('v', d)}, {self.F(f)}, {R4('a', 32*q+4*s)}, {C}")
        return o
    def pv(self, n, f, buf, zero):
        o = []
        for q in range(4):
            oc, d = Oreg(q, n)
            o.append(f"{MF} {R4(oc, d)}, {self.F(f)}, {R4('v', vS[buf]+8*q)}, {'0' if zero else R4(oc, d)}")
        return o
    def reorder(self, mf, on):
        if not on: return mf
        out = []
        for i in range(0, len(mf), 8):
            for n in range(4): out += [mf[i + n], mf[i + 4 + n]]
        return out
    def softmax(self, buf):
        seq = []; pend = []
        for q in range(4):
            b = vS[buf] + 8 * q; ts = vTS + q
            for r in range(8):
                seq.append(f"v_exp_f32 v{b+r}, v{b+r}")
                seq += pend; pend = []
                if r == 1: pend.append(f"v_add_f32 v{ts}, v{b}, v{b+1}")
                if r > 1: pend.append(f"v_add_f32 v{ts}, v{ts}, v{b+r}")
                if r % 2 == 1: pend.append(f"v_cvt_pk_bf16_f32 v{b+r//2}, v{b+r-1}, v{b+r}")
        seq.append(f"v_max3_f32 v{vT0}, v{vTS}, v{vTS+1}, v{vTS+2}")
        seq += pend
        seq += [f"v_add_f32 v{vT0}, v{vT0}, v{vTS+3}", f"v_cmp_nge_f32 vcc, s{sThi}, v{vT0}"]
        return seq
    NHEAD = 28
    def iteration(self, j, last, name):
        D = self.D; p = j & 1
        gaps = [[] for _ in range(128)]; self.after = []
        a = []; b = []
        for i in range(16): a += self.qk(i, i % NF, 1 - p); b += self.pv(i, i % NF, p, j == 0)
        mf = ([None] * 64 if last else self.reorder(a, self.order & 1)) + self.reorder(b, self.order & 2)
        G = self.G
        for st in range(32):
            i = st + D; g = 4 * st
            if i < 16: t, n, isk = j + 1, i, True
            elif i < 32: t, n, isk = j, i - 16, False
            else: t, n, isk = j + 2, i - 32, True
            if isk:
                if not last and t < 16:
                    if n % 2 == 0 and (n == 0 or n >= 8 or j == 0): gaps[max(g - 1, 0)].append(f"@vm p{t*16 + (7 if n == 0 else n + 1)}")
                    gaps[g] += self.kread(t, n, i % NF)
            else: gaps[g] += self.vread(t, n, i % NF)
            if j == 0 and st in self.gsteps: gaps[g + (2 if st < 16 else 3)].append(self.gst.pop(0))
            if (st >= 16 or (j == 0 and G < 40)) and not last:
                pre, ld, post = self.dma(G); G += 1
                gaps[g + 1] += pre; gaps[g + 2] += ld; gaps[g + 3] += post
            if st % 2 == 1 and (st >= 15 or not last) and not (last and st == 31):
                nx = (st + 1) % NF
                gaps[g + 3].append(f"@need v[{vF+4*nx}:{vF+4*nx+7}]")
        self.G = G
        assert not self.gst
        gaps[63].append(f"s_cbranch_vccnz L_stub_{name}")
        if j == 0:
            gaps[63] += [f"L_mid_{name}:"]
        ladd = [f"v_add_f32 v{vL+q}, v{vL+q}, v{vTS+q}" for q in range(4)]
        gaps[65] += ladd[:2]; gaps[67] += ladd[2:]
        self.stubs.append([f"L_stub_{name}:", f"s_mov_b32 s{sP0}, {((j*16) % 40)*1024}", f"s_mov_b32 s{sP1}, {((j*16+8) % 40)*1024}",
                           f"s_mov_b32 s{sFirst}, {int(j == 0)}", f"s_call_b64 s[{sRet}:{sRet+1}], L_rare{p}", f"s_branch L_back_{name}"])
        def place(ex, g0):
            k = 0
            for x in ex:
                gaps[g0 + 2 * k].append(x)
                if not x.startswith("s_"): k += 1
        gaps[3] += self.stamp(f"it{j}")
        if j == 2:
            gaps[1].append(f"v_mov_b32 v0, s{sTag}")
            gaps[6] += ["@vm gst"] + self.flagstore(0, sGf)
        if j == 11:
            place([f"s_and_b32 s{t0}, s{sGf}, 0xffffff80", f"v_and_b32 v{vPoll}, 3, v{vLane}", f"s_lshl_b32 s{t1}, s{sWave}, 7", f"v_lshl_add_u32 v{vPoll}, v{vPoll}, 2, s{t0}",
                   f"s_add_u32 s{t1}, s{t1}, {FLAG_FOLD}", f"v_lshrrev_b32 v0, 5, v{vLane}", f"s_sub_u32 s{t1}, s{t1}, s{t0}", f"v_mad_u32_u24 v{vPoll}, v0, s{t1}, v{vPoll}",
                   f"s_cmp_eq_u32 s{sTown}, 0", f"s_cselect_b32 s{t0}, 0, 128", f"v_nop", f"s_sub_u32 s{t0}, s{sGf}, s{t0}", f"v_writelane_b32 v{vPoll}, s{t0}, 4",
                   f"s_cmp_ge_u32 s{sTown}, 124", f"s_cselect_b32 s{t0}, 0, 128", f"v_nop", f"s_add_u32 s{t0}, s{sGf}, s{t0}", f"v_writelane_b32 v{vPoll}, s{t0}, 5"], 69)
        if j == 12:
            gaps[2].append(f"buffer_load_dword v0, v{vPoll}, {S(sWS)}, 0 offen sc1")
            gaps[69] += ["@need v0", f"v_cmp_ne_u32 vcc, s{sTag}, v0"]
            gaps[73] += ["s_cbranch_vccnz L_spin_tl", "L_back_tl:"]
            self.stubs.append(self.spin("tl", vPoll, 0))
            place([f"v_bfe_u32 v0, v{vLane}, 2, 1", f"s_lshl_b32 s{t0}, s{sTown}, 14", f"v_mul_u32_u24 v0, 192, v0", f"s_lshl_b32 s{t1}, s{sWave}, 12", f"v_add_u32 v0, v0, v{vK}",
                   f"s_add_u32 s{t0}, s{t0}, s{t1}", f"v_lshlrev_b32 v{vPoll}, 4, v{vLane}", f"s_sub_u32 s{t0}, s{t0}, s{sLds}", f"v_add_u32 v0, s{t0}, v0",
                   f"s_add_u32 s{t1}, s{t1}, {DW_F}", "v_nop"], 77)
        if j == 13:
            for n in range(4):
                rb, ss = n >> 1, n & 1; g = 4 * (24 + n); off = ss * 2048 + rb * 64
                gaps[g + 1].append(f"s_add_u32 m0, s{sLds}, {16384 + n*1024 - off}")
                gaps[g + 2].append(f"buffer_load_dwordx4 v0, {S(sXA)}, 0 offen offset:{off} sc1 lds ;#x48")
            gaps[113].append(f"s_add_u32 m0, s{sLds}, 20480")
            for n in range(4): gaps[4 * (28 + n) + 2].append(f"buffer_load_dwordx4 v{vPoll}, {S(sWS)}, s{t1} offen offset:{n*1024} sc1 lds ;#x48")
            place([f"s_lshr_b32 s{t0}, s2, 3", f"s_lshl_b32 s{t0}, s{t0}, 2", f"v_lshlrev_b32 v{vD[0]}, 7, v{vLane}", f"s_add_u32 s{t0}, s{t0}, s{sWave}", f"s_and_b32 s{t0}, s{t0}, 63", "v_nop",
                   f"s_mul_i32 s{t0}, s{t0}, 6144", f"s_add_u32 s{t0}, s{t0}, {WU_F}", f"v_min_u32 v{vD[0]}, {47*128}, v{vD[0]}"], 97)
            gaps[107] += [f"buffer_load_dword v{vD[1]}, v{vD[0]}, {S(sWS)}, s{t0} offen ;#x48"]
        if j == 14:
            place([f"s_lshl_b32 s{t0}, s{sTown}, 4", f"s_sub_u32 s{t0}, s{t0}, 4", f"v_mov_b32 v0, v{vPoll}", f"s_lshl_b32 s{sWoff}, s{sWave}, 15", f"v_lshrrev_b32 v{vD[0]}, 5, v{vLane}",
                   f"s_add_u32 s{sWoff}, s{sWoff}, {WU_F}", f"v_mul_u32_u24 v{vPoll}, 40, v{vD[0]}", f"v_sub_u32 v{vPoll}, v{vLane}, v{vPoll}", f"v_add_u32 v{vPoll}, s{t0}, v{vPoll}",
                   f"s_movk_i32 s{t0}, 2000", f"v_cmp_gt_u32 s[{t2}:{t3}], s{t0}, v{vPoll}", f"v_mul_u32_u24 v{vD[0]}, {8*PLANE}, v{vD[0]}", f"v_lshl_add_u32 v{vPoll}, v{vPoll}, 4, v{vD[0]}",
                   f"s_and_b32 s{t2}, s{t2}, 0xffffff", f"s_and_b32 s{t3}, s{t3}, 0xffffff00", f"v_mov_b32 v{vD[0]}, 0x40000000", f"s_mul_i32 s{t1}, s{sWave}, {16*PLANE}",
                   f"v_cndmask_b32 v{vPoll}, v{vD[0]}, v{vPoll}, s[{t2}:{t3}]"], 1)
            for n in range(8):
                g = 64 + 8 * n + 4
                gaps[g + 1].append(f"s_add_u32 m0, s{sLds}, {GB + n*1040}")
                gaps[g + 2].append(f"buffer_load_dwordx4 v{vPoll}, {S(sGP)}, s{t1} offen sc1 lds ;#gw")
                gaps[g + 3].append(f"s_add_u32 s{t1}, s{t1}, {PLANE}")
        if last:
            for n in range(16):
                ld, post = self.wload("a", 4 * n, n)
                if j == 15: gaps[64 + 4 * n + 2] += ld; gaps[64 + 4 * n + 3] += post
                else: self.after += ld + post
            if j == 15: gaps[64 + 4 * 12].append("@vm gw")
            else: self.after.append("@vm gw")
        sm = self.softmax(p)
        cur = sm[self.nhead:]
        left = spread(gaps, cur, list(range(5 if j == 0 else 0, 61)), force=(j == 0))
        if left: gaps[62] += left
        if not last:
            nx = self.softmax(1 - p)
            if j == 14:
                left = spread(gaps, nx[:-1], list(range(69, 128)), force=True)
                self.nhead = len(nx) - 1 - len(left)
            else:
                left = spread(gaps, nx[:self.NHEAD], list(range(69, 128)), force=True); self.nhead = self.NHEAD - len(left)
        out = weave(mf, gaps)
        if j == 0:
            k = out.index(f"L_mid_{name}:")
            out[k:k + 1] = [f"v_min3_f32 v{vT0}, v{vTS}, v{vTS+1}, v{vTS+2}", f"v_min_f32 v{vT0}, v{vT0}, v{vTS+3}",
                            f"v_cmp_nle_f32 vcc, s{sTlo}, v{vT0}", f"s_cbranch_vccnz L_stub_{name}", f"L_back_{name}:"]
        else:
            k = out.index(f"s_cbranch_vccnz L_stub_{name}")
            out.insert(k + 1, f"L_back_{name}:")
        return out + self.after

    def scaleO(self, q, f):
        L = []
        oc, d = Oreg(q, 0)
        if oc == "v":
            for r in range(64): L.append(f"v_mul_f32 v{d+r}, v{f}, v{d+r}")
        else:
            for r in range(0, 64, 4):
                L += [f"v_accvgpr_read_b32 v{48+k}, a{d+r+k}" for k in range(4)]
                L += [f"v_mul_f32 v{48+k}, v{f}, v{48+k}" for k in range(4)]
                L += [f"v_accvgpr_write_b32 a{d+r+k}, v{48+k}" for k in range(4)]
        return L
    def rare(self, p):
        L = [f"L_rare{p}:", "s_waitcnt lgkmcnt(0)", "s_nop 7", "s_nop 7"]
        b = vS[p]; o = vS[1 - p]
        for h in range(2):
            L.append(f"v_add_u32 v{vT0}, s{sP0 + h}, v{vK}")
            for grp in range(2):
                for k in range(4):
                    n = 4 * grp + k
                    L.append(f"ds_read_b128 {self.F(4+k)}, v{vT0} offset:{(n>>1)*2048 + (n&1)*256}")
                L.append("s_waitcnt lgkmcnt(0)")
                for k in range(4): L += self.qk(8 * h + 4 * grp + k, 4 + k, p, czero=True)
        L += ["s_nop 7", "s_nop 7"]
        for q in range(4):
            s = b + 8 * q; m = vTS + q
            L += [f"v_max3_f32 v{m}, v{s}, v{s+1}, v{s+2}", f"v_max3_f32 v{m}, v{m}, v{s+3}, v{s+4}", f"v_max3_f32 v{m}, v{m}, v{s+5}, v{s+6}", f"v_max_f32 v{m}, v{m}, v{s+7}",
                  f"v_mov_b32 v{vT0}, v{m}", "s_nop 1", f"v_permlane32_swap_b32 v{vT0}, v{m}", "s_nop 1", f"v_max_f32 v{m}, v{m}, v{vT0}",
                  f"v_mov_b32 v{vT0}, v{m}", "s_nop 1", f"v_permlane16_swap_b32 v{vT0}, v{m}", "s_nop 1", f"v_max_f32 v{m}, v{m}, v{vT0}",
                  f"v_sub_f32 v{m}, 0, v{m}"]
        L += [f"s_cmp_lg_u32 s{sFirst}, 0", f"s_cbranch_scc1 L_rare{p}_a"]
        for q in range(4): L.append(f"v_min_f32 v{vTS+q}, v{vTS+q}, v{vC+4*q}")
        for q in range(4):
            L += [f"v_sub_f32 v{vT0}, v{vTS+q}, v{vC+4*q}", f"v_exp_f32 v{vT0}, v{vT0}", "s_nop 0", f"v_mul_f32 v{vL+q}, v{vT0}, v{vL+q}"] + self.scaleO(q, vT0)
        L.append(f"L_rare{p}_a:")
        for q in range(4):
            L.append(f"v_sub_f32 v{vT0}, v{vTS+q}, v{vC+4*q}")
            for r in range(8): L += [f"v_add_f32 v{o+8*q+r}, v{o+8*q+r}, v{vT0}", f"v_add_f32 v{b+8*q+r}, v{b+8*q+r}, v{vTS+q}"]
            for r in range(4): L.append(f"v_mov_b32 v{vC+4*q+r}, v{vTS+q}")
        L += self.softmax(p)[:-1] + ["s_nop 1", f"s_setpc_b64 s[{sRet}:{sRet+1}]"]
        return L

    def tail(self):
        L = []
        R1, X32, LM, ZB, OB, TB = 0, 16384, 12288, 16384, 20480, 20480
        vR = [22, 23, 24, 25]; vSel = 16
        def areg(n): return (144 + 4 * n if n < 12 else 208 + 4 * (n - 12)) if n < 24 else (128 + 4 * (n - 24) if n < 28 else 192 + 4 * (n - 28))
        wq = [self.wload("a", 4 * n, n) for n in range(16, 32)] + [self.wload("a", 4 * n, n) for n in range(32)] + [self.wload("a", areg(n), n) for n in range(32)]
        def wnext():
            ld, post = wq.pop(0); return ld + post
        L += self.stamp("loopend")
        L += ["v_permlane32_swap_b32 v8, v10", "v_permlane32_swap_b32 v9, v11", f"v_permlane32_swap_b32 v{vC}, v{vC+8}", f"v_permlane32_swap_b32 v{vC+4}, v{vC+12}",
              "v_add_f32 v8, v8, v10", "v_add_f32 v10, v9, v11", f"v_lshlrev_b32 v26, 3, v{vLane}",
              f"v_permlane16_swap_b32 v{vC}, v{vC+4}", "v_permlane16_swap_b32 v8, v10", f"v_add_u32 v{vR[0]}, s{sLds}, v0", f"v_mov_b32 v9, v{vC}", "v_add_f32 v8, v8, v10",
              f"v_add_u32 v28, s{sLds}, v26"]
        L += ["L_redo:", f"ds_write_b64 v28, v[8:9] offset:{LM}"]
        sel = []
        for j in (1, 2, 3): sel += [[f"s_xor_b32 s{t1}, s{sWave}, {j}", f"s_mul_i32 s{t1}, s{t1}, {REG}", f"v_add_u32 v{vR[j]}, s{t1}, v0", f"v_lshl_add_u32 v{28+j}, v{vLane}, 3, s{t1}"]]
        sel += [[f"v_and_b32 v26, 15, v{vLane}", f"v_lshrrev_b32 v27, 4, v{vLane}", f"v_lshl_add_u32 v6, v26, 4, s{sLds}"], ["v_lshlrev_b32 v27, 2, v27", "v_sub_u32 v26, v26, v27", f"v_mov_b32 v{vSel}, 0"],
                [f"v_mov_b32 v{vSel+1}, 0", f"v_mov_b32 v{vSel+4}, 0", f"v_mov_b32 v{vSel+5}, 0"],
                ["v_and_b32 v27, 1, v26", "v_lshlrev_b32 v27, 4, v27", "v_mov_b32 v7, 0x3f80"], ["v_lshlrev_b32 v27, v27, v7", "v_lshrrev_b32 v26, 1, v26", "v_cmp_eq_u32 vcc, 0, v26"],
                [f"v_cndmask_b32 v{vSel+2}, v{vSel}, v27, vcc", "v_cmp_eq_u32 vcc, 1, v26"], [f"v_cndmask_b32 v{vSel+3}, v{vSel}, v27, vcc"]]
        k = 0
        for j in (1, 2, 3):
            for qb in range(2):
                for kp in range(2):
                    o = 128 + 64 * qb + 16 * j + 8 * kp; t = 32 + 4 * (k % 8); k += 1
                    L += [f"v_cvt_pk_bf16_f32 v{t+r}, v{o+2*r}, v{o+2*r+1}" for r in range(4)]
                    L.append(f"ds_write_b128 v{vR[0]}, {R4('v', t)} offset:{R1 + ((j-1)*4 + qb*2 + kp)*1024}")
                    L += wnext()
                    if sel: L += sel.pop(0)
        assert not sel
        Alo, Ahi = R4("v", vSel + 2), R4("v", vSel)
        L += ["@lg0", "s_barrier"] + self.stamp("B1")
        L += [f"ds_read_b64 {R2('v', 8+2*j)}, v{28+j} offset:{LM}" for j in (1, 2, 3)]
        def redmf(c, bufs):
            k = 0; rd = []; mf = []
            for j in (1, 2, 3):
                for qb in range(2):
                    for kp in range(2):
                        t = bufs[k]; k += 1; o = 128 + 64 * qb + 8 * kp
                        rd.append(f"ds_read_b128 {R4('v', t)}, v{vR[j]} offset:{R1 + ((j-1)*4 + qb*2 + kp)*1024}")
                        mf += [f"{MF} {R4(c, o)}, {Alo}, {R4('v', t)}, {R4(c, o)}", f"{MF} {R4(c, o+4)}, {Ahi}, {R4('v', t)}, {R4(c, o+4)}"]
            return rd, mf
        rd, mf = redmf("v", [32 + 4 * k for k in range(12)])
        L += rd
        L += [f"s_lshl_b32 s{t1}, s2, 2", f"s_add_u32 s{t1}, s{t1}, s{sWave}", f"s_lshl_b32 s{sXo}, s{t1}, 13", f"s_add_u32 s{sXo}, s{sXo}, {XCH}",
              f"s_lshl_b32 s{t3}, s{t1}, 7", f"s_add_u32 s{t3}, s{t3}, {FLAG_XCH}", f"s_add_u32 s{t2}, s{sXo}, 4096"]
        L += ["v_xor_b32 v26, v9, v11", "v_xor_b32 v27, v9, v13", "v_xor_b32 v7, v9, v15", "v_or3_b32 v26, v26, v27, v7", "v_cmp_ne_u32 vcc, 0, v26",
              "s_cbranch_vccnz L_slowA", "L_back_slowA:", "v_add_f32 v8, v8, v10", "v_add_f32 v12, v12, v14"]
        gaps = [[] for _ in range(24)]
        for n in range(4):
            ld, post = wq.pop(0); gaps[4 * n + 2] += ld; gaps[4 * n + 3] += post
        gaps[0] += ["v_add_f32 v8, v8, v12", f"v_lshlrev_b32 v26, 3, v{vLane}"]
        gaps[18] += [f"buffer_store_dwordx2 v[8:9], v26, {S(sWS)}, s{t2} offen sc1"]
        fl = [(s, rb) for s in range(8) for rb in range(2)]
        def aread(n):
            s, rb = fl[n]
            return f"ds_read_b128 {R4('v', 176+4*(n%4))}, v{vR[s>>1]} offset:{X32 + (rb*2 + (s&1))*1024}"
        gaps[16] += ["@need v[32:79]", "s_barrier"]
        for n in range(3): gaps[19 + n].append(aread(n))
        L += weave(mf, gaps) + ["s_nop 3"]
        for qb in range(2):
            for kp in range(2):
                o = 128 + 64 * qb + 8 * kp; t = 208 + 4 * (qb * 2 + kp)
                L += [f"v_cvt_pk_bf16_f32 v{t+r}, v{o+2*r}, v{o+2*r+1}" for r in range(4)]
                L.append(f"buffer_store_dwordx4 {R4('v', t)}, v0, {S(sWS)}, s{sXo} offen offset:{(qb*2+kp)*1024} sc1 ;#xch")
        L += self.stamp("pub")
        uacc = lambda eb, rb: 144 + (eb * 2 + rb) * 4
        mf = []; gaps = [[] for _ in range(64)]
        for n, (s, rb) in enumerate(fl):
            for eb in range(4):
                d = uacc(eb, rb)
                mf.append(f"{MF} {R4('v', d)}, {R4('v', 176+4*(n%4))}, {R4('a', (s*4+eb)*4)}, {R4('v', d) if s else '0'}")
            g = 4 * n
            if n + 3 < 16: gaps[g].append(aread(n + 3))
            if n + 1 < 16: gaps[g + 3].append(f"@need {R4('v', 176+4*((n+1)%4))} a[{fl[n+1][0]*16}:{fl[n+1][0]*16+15}]")
            if n >= 4:
                ld, post = wq.pop(0); gaps[g + 2] += ld; gaps[g + 3] += post
        ph2 = []; k = 0; pend = []
        for j in (1, 2, 3):
            for qb in range(2):
                for kp in range(2):
                    o = 128 + 64 * qb + 16 * j + 8 * kp; t = 32 + 8 * (k % 4); k += 1
                    ph2 += [f"v_accvgpr_read_b32 v{t+r}, a{o+r}" for r in range(4)] + pend + [f"v_accvgpr_read_b32 v{t+r}, a{o+r}" for r in range(4, 8)]
                    ph2 += [f"v_cvt_pk_bf16_f32 v{t+r}, v{t+2*r}, v{t+2*r+1}" for r in range(4)]
                    pend = [f"ds_write_b128 v{vR[0]}, {R4('v', t)} offset:{R1 + ((j-1)*4 + qb*2 + kp)*1024}"]
        ph2 += pend
        left = spread(gaps, ph2, list(range(0, 64)), force=True)
        print("   ph2 left", len(left))
        L += weave(mf, gaps) + self.stamp("ug")
        taps = [f"ds_read_b128 {R4('v', 64+4*i)}, v6 offset:{TB + i*256}" for i in range(16)]
        for x in left:
            L.append(x)
            if x.startswith("ds_write"): L += taps[:4] + wnext(); taps = taps[4:]
        L += taps + [f"v_mov_b32 v7, s{sTag}", "@vm xch"] + self.flagstore(7, t3, True)
        L += ["@lg0", "s_barrier"] + self.stamp("B2")
        rd, mf = redmf("a", [32 + 4 * k for k in range(8)] + [128 + 4 * k for k in range(4)])
        c0 = -2 * 0.7978845608028654 * LOG2E / ALPHA; c1 = c0 * 0.044715 / ALPHA ** 2
        L += rd + [f"v_and_b32 v4, 15, v{vLane}", f"v_lshrrev_b32 v5, 4, v{vLane}",
              f"s_lshl_b32 s{t1}, s{sTown}, 14", f"s_lshl_b32 s{t2}, s{sWave}, 7", f"s_add_u32 s{t1}, s{t1}, s{t2}",
              "v_lshlrev_b32 v13, 11, v5", "v_lshl_add_u32 v13, v4, 3, v13", f"v_add_u32 v13, s{t1}, v13", "v_add_u32 v14, 8192, v13",
              f"s_xor_b32 s{t3}, s{t3}, 512", f"s_xor_b32 s{sXo}, s{sXo}, 32768", f"s_add_u32 s{t2}, s{sXo}, 4096"]
        gaps = [[] for _ in range(24)]
        for n in range(6):
            ld, post = wq.pop(0); gaps[4 * n + 1] += ld; gaps[4 * n + 2] += post
        adr = [f"v_mov_b32 v2, {f2u(c0):#x}", f"v_mov_b32 v3, {f2u(c1):#x}", f"v_mov_b32 v6, s{t3}", "v_mov_b32 v10, v8", "v_mov_b32 v11, v9",
               "v_and_b32 v15, 1, v5", "v_lshrrev_b32 v12, 1, v5", "v_lshl_add_u32 v15, v15, 1, v12",
               "v_lshrrev_b32 v27, 3, v4", "v_mul_u32_u24 v12, 12, v27", "v_xor_b32 v12, v12, v4", "v_mul_u32_u24 v12, 1040, v12",
               "v_mul_u32_u24 v27, 640, v27", "v_lshl_add_u32 v12, v15, 6, v12", f"v_add3_u32 v12, v12, v27, s{sLds}",
               "v_lshrrev_b32 v26, 1, v15", "v_lshrrev_b32 v27, 3, v4", "v_lshl_add_u32 v26, v26, 1, v27", "v_lshlrev_b32 v26, 10, v26",
               "v_bfe_u32 v27, v4, 1, 1", "v_lshl_add_u32 v26, v27, 9, v26", "v_bfe_u32 v27, v4, 2, 1", "v_lshl_add_u32 v26, v27, 8, v26",
               "v_and_b32 v27, 1, v15", "v_lshl_add_u32 v26, v27, 7, v26", "v_and_b32 v27, 1, v4", "v_lshl_add_u32 v26, v27, 3, v26",
               "v_bfe_u32 v27, v26, 8, 2", "v_lshl_add_u32 v26, v27, 5, v26", "v_bfe_u32 v27, v26, 10, 1", "v_lshl_add_u32 v26, v27, 4, v26", f"v_add_u32 v15, s{sLds}, v26",
               f"v_and_b32 v27, 31, v{vLane}", "v_lshlrev_b32 v27, 3, v27"]
        left = spread(gaps, adr, list(range(0, 24)), force=True)
        L += weave(mf, gaps) + left + [f"v_mov_b32 v4, {f2u(ALPHA):#x}"] + self.stamp("ph2")
        exq = [a + b for a, b in wq[:-20]]; wq = wq[-20:]
        exq += [[f"buffer_load_dwordx2 {R2('v', 240+2*(rb*4+r))}, v{13+rb}, {S(sX)}, 0 offen offset:{r*512}"] for rb in range(2) for r in range(4)]
        ib = [32 + 4 * k for k in range(8)] + [128 + 4 * k for k in range(4)]
        def ex_u(k, d):
            o = exq.pop(0) if exq else []
            if k == 2 and d != 168: o += exq.pop(0)
            if k == 1 and d >= 160: o += [f"ds_read_b128 {R4('v', ib[p])}, v12 offset:{GB + p*16}" for p in (range(6) if d == 160 else range(6, 12))]
            if k == 0 and d == 160: o += [f"buffer_load_dword v7, v6, {S(sWS)}, 0 offen sc1"]
            return o
        L += ["v_permlane32_swap_b32 v10, v8", "v_permlane32_swap_b32 v11, v9"]
        L += self.gelu([144 + 8 * n for n in range(4)], ex_u, 176, 2, 4)
        L += self.stamp("gelu")
        for p in range(12):
            if p == self.pcheck:
                L += ["@need v7", f"v_cmp_ne_u32 vcc, s{sTag}, v7", "s_cbranch_vccnz L_spin_xc", "L_back_xc:"]
                self.stubs.append(self.spin("xc", 6, 7))
                exq = [[f"buffer_load_dwordx2 v[184:185], v27, {S(sWS)}, s{t2} offen sc1"]] + \
                      [[f"buffer_load_dwordx4 {R4('v', 192+4*n)}, v0, {S(sWS)}, s{sXo} offen offset:{n*1024} sc1"] for n in range(4)] + exq
            for _ in range(2):
                if exq and p >= 1: L += exq.pop(0)
            for o in range(7, -1, -1):
                k = p - (o + 1) // 2
                if 0 <= k < 8:
                    for ch in range(4):
                        a_, x_, w_ = 208 + 4 * o + ch, ib[p] + ch, 64 + 32 * (o & 1) + 4 * k + ch
                        L.append(f"v_dot2c_f32_bf16 v{a_}, v{x_}, v{w_}" if k else f"v_dot2_f32_bf16 v{a_}, v{x_}, v{w_}, 0")
        print("   exq left", len(exq))
        while exq: L += exq.pop(0)
        L += self.stamp("conv")
        L += ["v_cmp_ne_u32 vcc, v9, v185", "s_cbranch_vccnz L_slowB", "L_back_slowB:", "v_add_f32 v8, v8, v184", "@need v[192:207]"]
        mf = []
        for qb in range(2):
            for kp in range(2):
                o = 128 + 64 * qb + 8 * kp; t = 192 + 4 * (qb * 2 + kp)
                mf += [f"{MF} {R4('a', o)}, {Alo}, {R4('v', t)}, {R4('a', o)}", f"{MF} {R4('a', o+4)}, {Ahi}, {R4('v', t)}, {R4('a', o+4)}"]
        gaps = [[] for _ in range(8)]
        gaps[0] += [f"v_mul_f32 v8, {f2u(ALPHA):#x}, v8"]; gaps[1] += ["v_rcp_f32 v8, v8"]; gaps[2] += ["v_mov_b32 v9, v8"]; gaps[4] += ["v_permlane16_swap_b32 v8, v9"]
        gaps[0] += ["v_lshlrev_b32 v5, 5, v5"]; gaps[2] += [f"v_xor_b32 v176, v5, v{vR[0]}"]
        spread(gaps, [f"v_xor_b32 v{176+2*j}, v5, v{vR[j]}" for j in (1, 2, 3)] + [f"v_xor_b32 v{177+2*j}, 16, v{176+2*j}" for j in range(4)], [3, 5, 6, 7])
        L += weave(mf, gaps)
        for o in range(0, 8, 2):
            L += [f"v_mul_f32 v{208+4*(o+e)+ch}, v{208+4*(o+e)+ch}, v{144+8*ch+o+e}" for e in range(2) for ch in range(4)]
            L += [f"v_cvt_pk_bf16_f32 v{208+4*o+h}, v{208+4*o+2*h}, v{209+4*o+2*h}" for h in range(4)]
            L += [f"v_xor_b32 v{10+e}, {(o+e)*16}, v15" for e in range(2)]
            L += [f"ds_write_b64 v{10+e}, {R2('v', 208+4*o+2*e)} offset:{ZB}" for e in range(2)]
        for qb in range(2):
            for kp in range(2):
                o = 128 + 64 * qb + 8 * kp; t = 64 + 8 * (qb * 2 + kp)
                L += [f"v_accvgpr_read_b32 v{t+r}, a{o+r}" for r in range(8)]
                L += [f"v_pk_mul_f32 {R2('v', t+2*r)}, {R2('v', t+2*r)}, v[8:9] op_sel:[0,{qb}] op_sel_hi:[1,{qb}]" for r in range(4)]
                L += [f"v_cvt_pk_bf16_f32 v{t+r}, v{t+2*r}, v{t+2*r+1}" for r in range(4)]
                L.append(f"ds_write_b128 v{vR[0]}, {R4('v', t)} offset:{OB + (qb*2+kp)*1024}")
        L += ["@lg0", "s_barrier"] + self.stamp("B3")
        fl = [(0, s, rb) for s in range(8) for rb in range(2)] + [(1, s, rb) for s in range(8) for rb in range(2)]
        def fread(n):
            m, s, rb = fl[n]
            return f"ds_read_b128 {R4('v', 96+4*(n%8))}, v{vR[s>>1] if m else 176+s} offset:{(OB if m else ZB) + (rb*2 + (s&1))*1024}"
        L += [fread(n) for n in range(4)]
        facc = lambda eb, rb: 32 + (rb * 4 + eb) * 4
        for rb in range(2):
            for r in range(4):
                x = 240 + 2 * (rb * 4 + r)
                L += [f"v_lshlrev_b32 v{facc(0, rb)+r}, 16, v{x}", f"v_and_b32 v{facc(1, rb)+r}, s{sMask}, v{x}",
                      f"v_lshlrev_b32 v{facc(2, rb)+r}, 16, v{x+1}", f"v_and_b32 v{facc(3, rb)+r}, s{sMask}, v{x+1}"]
        mf = []; gaps = [[] for _ in range(128)]
        for n, (m, s, rb) in enumerate(fl):
            for eb in range(4):
                d = facc(eb, rb); w = R4("a", areg(s * 4 + eb) if m else (s * 4 + eb) * 4)
                mf.append(f"{MF} {R4('v', d)}, {R4('v', 96+4*(n%8))}, {w}, {R4('v', d)}")
            g = 4 * n
            if n + 4 < 32: gaps[g].append(fread(n + 4))
            if n + 1 < 32:
                m2, s2, _ = fl[n + 1]
                wr = " ".join(R4("a", areg(s2 * 4 + e) if m2 else (s2 * 4 + e) * 4) for e in range(4))
                gaps[g + 3].append(f"@need {R4('v', 96+4*((n+1)%8))} {wr}")
            if wq:
                ld, post = wq.pop(0); gaps[g + 2] += ld; gaps[g + 3] += post
        L += weave(mf, gaps) + ["s_nop 3"] + self.stamp("fin")
        for rb in range(2):
            for r in range(4):
                t = 128 + 2 * (rb * 4 + r)
                L += [f"v_cvt_pk_bf16_f32 v{t}, v{facc(0, rb)+r}, v{facc(1, rb)+r}", f"v_cvt_pk_bf16_f32 v{t+1}, v{facc(2, rb)+r}, v{facc(3, rb)+r}",
                      f"buffer_store_dwordx2 {R2('v', t)}, v{13+rb}, {S(sOut)}, 0 offen offset:{r*512}"]
        def bcast(src, d):
            return [f"v_mov_b32 v{d}, v{src}", f"v_mov_b32 v{d+2}, v{src}", "s_nop 1", f"v_permlane32_swap_b32 v{d}, v{d+2}", "s_nop 1",
                    f"v_mov_b32 v{d+1}, v{d}", f"v_mov_b32 v{d+3}, v{d+2}", "s_nop 1", f"v_permlane16_swap_b32 v{d}, v{d+1}", f"v_permlane16_swap_b32 v{d+2}, v{d+3}", "s_nop 1"]
        A = ["L_slowA:", f"s_cmp_lg_u32 s{sRedo}, 0", "s_cbranch_scc1 L_back_slowA", f"s_mov_b32 s{sRedo}, 1", "s_waitcnt vmcnt(0) lgkmcnt(0)",
             f"s_sub_u32 s{sWoff}, s{sWoff}, {3*4096}",
             "v_min3_f32 v26, v9, v11, v13", "v_min_f32 v26, v26, v15", "v_sub_f32 v27, v26, v9", "v_exp_f32 v27, v27", "v_mov_b32 v9, v26", "v_mul_f32 v8, v8, v27"] + bcast(27, 2)
        for q in range(4): A += self.scaleO(q, 2 + q)
        A += ["s_barrier", "s_branch L_redo"]
        B = ["L_slowB:", "s_waitcnt vmcnt(0)", "v_min_f32 v10, v9, v185", "v_sub_f32 v9, v10, v9", "v_sub_f32 v185, v10, v185", "v_exp_f32 v9, v9", "v_exp_f32 v185, v185", "s_nop 0",
             "v_mul_f32 v8, v8, v9", "v_mul_f32 v184, v184, v185", "v_mov_b32 v10, v9", "v_mov_b32 v11, v185", "s_nop 1",
             "v_permlane16_swap_b32 v9, v10", "v_permlane16_swap_b32 v185, v11", "s_nop 1"]
        for qb in range(2):
            f1, f2 = (9, 10)[qb], (185, 11)[qb]
            for r in range(16):
                o = 128 + 64 * qb + r
                B += [f"v_accvgpr_read_b32 v2, a{o}", f"v_mul_f32 v2, v{f1}, v2", f"v_accvgpr_write_b32 a{o}, v2"]
            for r in range(8):
                x = 192 + 8 * qb + r
                B += [f"v_lshlrev_b32 v2, 16, v{x}", f"v_and_b32 v3, s{sMask}, v{x}", f"v_mul_f32 v2, v{f2}, v2", f"v_mul_f32 v3, v{f2}, v3", f"v_cvt_pk_bf16_f32 v{x}, v2, v3"]
        B += ["s_nop 1", "s_branch L_back_slowB"]
        self.stubs += [A, B]
        return L

    def fold(self):
        L = ["L_fold:"]
        fst = lambda k: [f"s_memrealtime s[{88+2*k}:{89+2*k}]"] if self.stamps else []
        sF = sB; sA, sBm, sU = sX, sWq, sWk
        L += [f"s_sub_u32 s{sF}, s2, 252"]
        L += srd(sBm, f"s{pWm}", f"s{pWm+1}", 262144) + srd(sU, f"s{pWup}", f"s{pWup+1}", 262144)
        L += srd(sA, f"s{pDw}", f"s{pDw+1}", 7680)
        L += ["v_bfe_u32 v12, v0, 4, 3", "v_lshrrev_b32 v16, 7, v0", "v_lshl_add_u32 v12, v12, 1, v16", "v_lshlrev_b32 v12, 9, v12", "v_lshl_add_u32 v12, v8, 3, v12",
              f"s_lshl_b32 s{t0}, s{sF}, 7", f"v_add_u32 v12, s{t0}, v12", "v_subrev_u32 v16, 512, v12",
              f"buffer_load_dwordx2 v[2:3], v16, {S(sA)}, 0 offen", f"buffer_load_dwordx2 v[4:5], v12, {S(sA)}, 0 offen"]
        L += [f"s_lshl_b32 s{t2}, s{sWave}, 15", f"v_add_u32 v24, s{t2}, v13",
              "v_bfe_u32 v16, v8, 2, 1", "v_bfe_u32 v17, v8, 3, 1", "v_lshl_add_u32 v16, v16, 1, v17", "v_and_b32 v17, 3, v8",
              "v_lshl_add_u32 v18, v16, 2, v17", "v_xor_b32 v18, v18, v10", "v_lshlrev_b32 v18, 4, v18",
              "v_lshl_add_u32 v16, v16, 3, v17", "v_lshl_add_u32 v18, v16, 9, v18", f"v_add_u32 v32, s{sLds}, v18",
              "v_xor_b32 v18, v8, v10", "v_lshlrev_b32 v18, 4, v18", "v_lshl_add_u32 v18, v8, 9, v18", f"v_add_u32 v36, s{sLds}, v18"]
        L += [f"v_xor_b32 v{b+k}, {k*64}, v{b}" for b in (32, 36) for k in range(1, 4)]
        L += [f"v_xor_b32 v{40+k}, {k*32}, v24" for k in range(8)]
        mats = ((pWao, "v", 128, False), (pWdn, "a", 0, False), (pWv, "a", 128, True))
        def issue(grp):
            o = []
            ptr, c, base, natural = mats[grp // 2]
            if grp % 2 == 0: o += srd(sA, f"s{ptr}", f"s{ptr+1}", 131072)
            for k in range(16):
                if k % 4 == 0: o += [f"s_add_u32 m0, s{sLds}, {(grp & 1)*16384 + k*1024}", f"s_mov_b32 s{t0}, {(grp & 1)*16384 + k*1024}"]
                sw = (k & 7) if natural else ((k & 1) | ((k >> 2) << 1))
                o.append(f"buffer_load_dwordx4 v{40+sw}, {S(sA)}, s{t0} offen offset:{(k&3)*1024} lds ;#fa{grp}")
            return o
        L += issue(0) + issue(1)
        L += [f"s_mov_b32 s{t0}, 0x05040100", f"s_mov_b32 s{t1}, 0x07060302",
              f"v_perm_b32 v20, v4, v2, s{t0}", f"v_perm_b32 v21, v4, v2, s{t1}", f"v_perm_b32 v22, v5, v3, s{t0}", f"v_perm_b32 v23, v5, v3, s{t1}"]
        for grp in range(6):
            ptr, c, base, natural = mats[grp // 2]
            L.append(f"@vm fa{grp}")
            for ks in range(8):
                for hb in range(2):
                    L.append(f"ds_read_b128 {R4(c, base + (ks*4 + (grp&1)*2 + hb)*4)}, v{(36 if natural else 32) + (ks&3)} offset:{(grp&1)*16384 + hb*(8192 if natural else 2048) + (ks>>2)*256}")
            L.append("@lg0")
            if grp + 2 < 6: L += issue(grp + 2)
        L += fst(0) + ["s_barrier"]
        L += [f"v_lshrrev_b32 v12, 3, v{vLane}", f"v_and_b32 v13, 7, v{vLane}", "v_lshlrev_b32 v13, 4, v13",
              f"s_lshl_b32 s{t0}, s{sWave}, 6", f"v_add_u32 v12, s{t0}, v12", f"s_lshl_b32 s{t0}, s{sF}, 7", f"v_add_u32 v13, s{t0}, v13",
              "v_lshl_add_u32 v14, v12, 9, v13", "v_lshl_add_u32 v15, v12, 10, v13", f"s_lshl_b32 s{t1}, s{sWave}, 13"]
        for im in (0, 1, 3):
            for p in range(8):
                so = (im * 131072 + p * 4096) if im < 2 else p * 8192
                L += [f"s_add_u32 m0, s{t1}, {im*32768 + p*1024}", f"s_mov_b32 s{t0}, {so}",
                      f"buffer_load_dwordx4 v{14 if im < 2 else 15}, {S(sBm if im < 2 else sU)}, s{t0} offen lds ;#im"]
        L += ["v_lshlrev_b32 v12, 4, v0",
              f"s_mul_i32 s{t0}, s{sF}, 4096", f"s_add_u32 s{t0}, s{t0}, {DW_F}",
              f"buffer_store_dwordx4 v[20:23], v12, {S(sWS)}, s{t0} offen sc1"]
        L += ["v_lshrrev_b32 v16, 2, v8", "v_lshl_add_u32 v16, v10, 3, v16", "v_lshlrev_b32 v16, 7, v16", "v_and_b32 v18, 3, v8",
              "v_lshl_add_u32 v26, v18, 3, v16", "v_add_u32 v27, 65536, v26",
              "v_lshlrev_b32 v31, 10, v18", "v_lshl_add_u32 v31, v9, 8, v31", "v_lshrrev_b32 v18, 2, v8", "v_lshl_add_u32 v31, v18, 4, v31",
              f"s_lshl_b32 s{t0}, s{sWave}, 13", f"v_add_u32 v27, s{t0}, v27", f"v_add_u32 v31, s{t0}, v31", "v_add_u32 v31, 65536, v31",
              f"v_lshlrev_b32 v28, 4, v{vLane}", "v_add_u32 v29, 131072, v28", f"v_add_u32 v30, s{t0}, v29",
              f"s_xor_b32 s{t1}, s{sWave}, s{sF}", f"s_lshl_b32 s{t1}, s{t1}, 13", f"s_lshl_b32 s{t2}, s{sF}, 15", f"s_add_u32 s{sXo}, s{t1}, s{t2}"]
        L += self.tagcalc()
        L += ["@vm im", "s_barrier"] + fst(1)
        def gemm(c, abase, bread):
            o = [x for eb in range(4) for x in bread(0, eb, 32 + 4 * eb)]
            for ks in range(8):
                o.append(f"@need v[{32+16*(ks&1)}:{47+16*(ks&1)}]")
                if ks < 7: o += [x for eb in range(4) for x in bread(ks + 1, eb, 32 + 16 * (1 - (ks & 1)) + 4 * eb)]
                for db in range(4):
                    for eb in range(4):
                        d = 64 + (db * 4 + eb) * 4
                        o.append(f"{MF} {R4('v', d)}, {R4(c, abase+(ks*4+db)*4)}, {R4('v', 32+16*(ks&1)+4*eb)}, {R4('v', d) if ks else '0'}")
            o += ["s_nop 7"]
            return o
        def trP(im):
            return lambda ks, eb, t: [f"ds_read_b64_tr_b16 {R2('v', t+2*j)}, v26 offset:{im*32768 + ks*4096 + j*512 + eb*32}" for j in range(2)]
        def pack(p, eb, t):
            o = []
            for hb in range(2):
                d = 64 + ((2 * p + hb) * 4 + eb) * 4
                o += [f"v_cvt_pk_bf16_f32 v{t+2*hb}, v{d}, v{d+1}", f"v_cvt_pk_bf16_f32 v{t+2*hb+1}, v{d+2}, v{d+3}"]
            return o
        def emit_out(base, ob, src=None):
            o = []
            for p in range(2):
                for eb in range(4):
                    t = 32 + 4 * (p * 4 + eb)
                    o += (src or pack)(p, eb, t)
            o += [f"ds_write_b128 v31, {R4('v', 32+4*(p*4+eb))} offset:{p*4096 + eb*64}" for p in range(2) for eb in range(4)]
            o += ["@lg0", "v_subrev_u32 v12, 65536, v30"]
            o += [f"ds_read_b128 {R4('v', ob+4*k)}, v12 offset:{k*1024}" for k in range(8)]
            for p in range(2):
                o.append(f"s_add_u32 s{t0}, s{sXo}, {base + p*4096}")
                for eb in range(4):
                    o.append(f"buffer_store_dwordx4 {R4('v', ob+4*(p*4+eb))}, v28, {S(sWS)}, s{t0} offen offset:{eb*1024} sc1")
            return o
        L += emit_out(WU_F, 64, lambda p, eb, t: [f"ds_read_b64_tr_b16 {R2('v', t+2*j)}, v27 offset:{32768 + p*4096 + j*512 + eb*32}" for j in range(2)])
        L += fst(2) + gemm("v", 128, trP(0)) + fst(3)
        for p in range(2):
            for eb in range(4):
                t = 32 + 4 * (p * 4 + eb)
                L += pack(p, eb, t) + [f"ds_write_b128 v30, {R4('v', t)} offset:{(p*4+eb)*1024}"]
        L += ["@lg0", "s_barrier"]
        L += gemm("a", 0, trP(1)) + fst(4) + emit_out(WD_F, 128) + fst(5)
        L += gemm("a", 128, lambda ks, eb, t: [f"ds_read_b128 {R4('v', t)}, v29 offset:{(ks*4+eb)*1024}"]) + emit_out(WV_F, 160) + ["s_waitcnt vmcnt(0)"]
        L += [f"s_lshl_b32 s{t0}, s{sF}, 5", f"s_add_u32 s{t0}, s{t0}, s{sWave}", f"s_lshl_b32 s{t1}, s{t0}, 2", f"s_add_u32 s{t1}, s{t1}, {FLAG_FOLD}",
              f"v_mov_b32 v7, s{sTag}", f"v_lshlrev_b32 v6, 26, v{vLane}", f"buffer_store_dword v7, v6, {S(sWS)}, s{t1} offen sc1",
              ] + ([] if not self.stamps else ["s_memrealtime s[86:87]", "s_waitcnt lgkmcnt(0)", "s_sub_u32 s86, s86, s84", "v_mov_b32 v8, s86", f"s_lshl_b32 s{t1}, s{sF}, 2", f"s_add_u32 s{t1}, s{t1}, s{sWave}", f"s_lshl_b32 s{t1}, s{t1}, 2",
              f"s_add_u32 s{t1}, s{t1}, {TS_OFF + (1 << 20)}", "v_mov_b32 v9, 0", f"buffer_store_dword v8, v9, {S(sWS)}, s{t1} offen"] + [x for k in range(6) for x in (f"s_sub_u32 s86, s{88+2*k}, s84", "v_mov_b32 v8, s86", f"buffer_store_dword v8, v9, {S(sWS)}, s{t1} offen offset:{64*(k+1)}")]) + [
              f"s_cmp_lg_u32 s{t0}, 0", "s_cbranch_scc1 L_end"]
        L += [f"v_lshrrev_b32 v12, 2, v{vLane}", "v_min_u32 v13, 13, v12", "v_min_u32 v14, 3, v12", f"v_and_b32 v15, 3, v{vLane}", "v_lshlrev_b32 v15, 2, v15",
              "v_lshl_add_u32 v12, v12, 7, v15", "v_lshl_add_u32 v13, v13, 7, v15", "v_lshl_add_u32 v14, v14, 7, v15", f"s_mov_b32 s{sCnt}, 0", "L_ep:", "s_sleep 8"]
        for n in range(17):
            so = FLAG_FOLD if n == 16 else FLAG_XA + n * 2048
            L += [f"s_mov_b32 s{t0}, {so}", f"buffer_load_dword v{32+n}, v{14 if n == 16 else (13 if n & 7 == 7 else 12)}, {S(sWS)}, s{t0} offen sc1"]
        L += ["s_waitcnt vmcnt(0)"]
        for n in range(17): L.append(f"v_xor_b32 v{32+n}, s{sTag}, v{32+n}")
        for n in range(1, 17, 2): L.append(f"v_or3_b32 v32, v32, v{32+n}, v{33+n}")
        L += ["v_cmp_ne_u32 vcc, 0, v32", f"s_add_u32 s{sCnt}, s{sCnt}, 1", f"s_cmp_gt_u32 s{sCnt}, 0x8000", "s_cbranch_scc1 L_ep2", "s_cbranch_vccnz L_ep", "L_ep2:",
              f"buffer_store_dword v7, v6, {S(sWS)}, 0 offen sc1", "s_endpgm"]
        return L

    def dump_stamps(self):
        if not self.stamps: return []
        if self.amp:
            L = ["s_waitcnt vmcnt(0)"] + self.stamp("end") + ["s_waitcnt lgkmcnt(0)"]
            r = STAMPS[self.stnames.index(self.amp)]; e = STAMPS[self.stnames.index("end")]
            return L + [f"s_sub_u32 s{t0}, s{r}, s84", f"s_add_u32 s{t0}, s{t0}, s{e}", "L_amp:", f"s_memrealtime s[{t2}:{t3}]", "s_waitcnt lgkmcnt(0)",
                        f"s_sub_u32 s{t1}, s{t2}, s{t0}", f"s_cmp_lt_i32 s{t1}, 0", "s_cbranch_scc1 L_amp"]
        L = ["s_waitcnt vmcnt(0)"] + self.stamp("end") + ["s_waitcnt lgkmcnt(0)", f"s_lshl_b32 s{t0}, s2, 2", f"s_add_u32 s{t0}, s{t0}, s{sWave}",
             f"s_lshl_b32 s{t0}, s{t0}, 7", f"s_add_u32 s{t0}, s{t0}, {TS_OFF}", "v_mov_b32 v2, 0"]
        for n in range(self.nst): L += [f"v_mov_b32 v3, s{STAMPS[n]}", f"buffer_store_dword v3, v2, {S(sWS)}, s{t0} offen offset:{4*n}"]
        return L

    def build(self, path):
        st = WState()
        ent = resolve(self.entry(), st)
        fold = resolve(self.fold(), st.copy())
        c = self.front() + self.stamp("loop")
        for j in range(14): c += self.iteration(j, False, f"i{j}")
        c += [f"s_cmp_lg_u32 s{sN15}, 0", "s_cbranch_scc1 L_n15"]
        common = resolve(c, st)
        G, nh = self.G, self.nhead
        sb = st.copy()
        pa = resolve(self.iteration(14, False, "i14") + self.iteration(15, True, "i15"), st)
        self.G, self.nhead = G, nh
        pb = resolve(["L_n15:"] + self.iteration(14, True, "l14") + ["s_branch L_tail"], sb)
        tl = self.tail()
        ta = resolve(tl, st.copy()); tb = resolve(tl, sb.copy())
        assert ta == tb, "tail waits differ between paths"
        tailc = ["L_tail:"] + ta + self.dump_stamps() + ["s_endpgm"]
        rare = [self.rare(0), self.rare(1)]
        a = Asm()
        a(f'.amdgcn_target "amdgcn-amd-amdhsa--gfx950"\n.text\n.globl {KN}\n.p2align 12\n.p2align 8\n.type {KN},@function\n{KN}:')
        a.extend(ent + common + pa + tailc + pb)
        for s_ in self.stubs + rare: a.extend(s_)
        a.extend(fold)
        a("L_end:\ns_endpgm")
        a(f""".section .rodata,"a"
.p2align 6
.amdhsa_kernel {KN}
.amdhsa_next_free_vgpr 512
.amdhsa_next_free_sgpr 102
.amdhsa_accum_offset 256
.amdhsa_group_segment_fixed_size 0
.amdhsa_kernarg_size 96
.amdhsa_user_sgpr_count 2
.amdhsa_user_sgpr_kernarg_segment_ptr 1
.amdhsa_system_sgpr_workgroup_id_x 1
.end_amdhsa_kernel""")
        hdr = open("header.txt").read()
        if self.stamps: hdr += "; stamps " + " ".join(self.stnames) + "\n"
        open(path, "w").write(hdr + a.text())
        n = 0
        import asmlib; asmlib._seen.clear()
        n += len(check_trace(ent + common + pa + tailc, "pathA"))
        n += len(check_trace(ent + common + pb + tailc, "pathB"))
        n += len(check_trace(ent + fold, "fold"))
        full = ent + common + pa + tailc
        stub = {s_[0][:-1]: s_ for s_ in self.stubs}
        for name in ("i0", "i1", "i2", "i15"):
            k = full.index(f"s_cbranch_vccnz L_stub_{name}"); e = full.index(f"L_back_{name}:")
            p = int(name[1:]) & 1
            n += len(check_trace(full[:k + 1] + stub[f"L_stub_{name}"] + rare[p] + full[e:e + 400], "rare" + name))
        k = full.index("s_cbranch_vccnz L_slowA")
        n += len(check_trace(full[:k + 1] + stub["L_slowA"] + full[full.index("L_redo:"):], "slowA"))
        k = full.index("s_cbranch_vccnz L_slowB")
        n += len(check_trace(full[:k + 1] + stub["L_slowB"] + full[k + 1:], "slowB"))
        import subprocess
        r = subprocess.run(["clang", "-x", "assembler", "-target", "amdgcn-amd-amdhsa", "-mcpu=gfx950", "-c", path, "-o", "x.o"], capture_output=True, text=True)
        print(path, "problems", n, "lines", len(a.lines), "asm", "ok" if r.returncode == 0 else r.stderr[:600])

ALLST = "b0 b1 gg mseen gelu1 g2 loop loopend B1 pub B2 gelu conv B3 fin".split()
ST1 = "b0 x b1 gg gelu1 g2 loop it1 it2 it3 it13 it14 loopend B1 conv".split()
if __name__ == "__main__":
    E = "exp/"
    Gen().build("standalone__conformer_family_branchformer__speech.s")
    Gen(stamps="loop loopend".split()).build(E + "k_st.s")
```

```python
import re

TRANS = ("v_exp_f32", "v_log_f32", "v_rcp_f32", "v_rsq_f32", "v_sqrt_f32", "v_sin_f32", "v_cos_f32", "v_rcp_iflag_f32")

def regs_of(tok):
    tok = tok.strip()
    t = tok
    if t.startswith("-"): t = t[1:]
    if t.startswith("abs(") : t = t[4:-1]
    if t.startswith("|"): t = t.strip("|")
    m = re.fullmatch(r"([vas])(\d+)", t)
    if m: return {(m.group(1), int(m.group(2)))}
    m = re.fullmatch(r"([vas])\[(\d+):(\d+)\]", t)
    if m: return {(m.group(1), i) for i in range(int(m.group(2)), int(m.group(3)) + 1)}
    if t in ("vcc", "vcc_lo", "vcc_hi"): return {("x", "vcc")}
    if t in ("exec", "exec_lo", "exec_hi"): return {("x", "exec")}
    if t == "m0": return {("x", "m0")}
    if t == "scc": return {("x", "scc")}
    return set()

def split_ops(s):
    out, depth, cur = [], 0, ""
    for ch in s:
        if ch in "[(": depth += 1
        if ch in "])": depth -= 1
        if ch == "," and depth == 0:
            out.append(cur.strip()); cur = ""
        else:
            cur += ch
    if cur.strip(): out.append(cur.strip())
    return out

class Ins:
    __slots__ = ("text", "op", "ops", "mods", "kind", "w", "r", "srcc", "srcab", "passes", "ws", "lds_dma", "wide_store", "dpp")
    def __init__(self, text):
        self.text = text
        t = text.split(";")[0].strip()
        parts = t.split(None, 1)
        self.op = parts[0]
        rest = parts[1] if len(parts) > 1 else ""
        ops = split_ops(rest)
        mods = []
        if ops:
            last = ops[-1].split()
            if len(last) > 1 and not self.op.startswith("s_waitcnt"):
                ops[-1] = last[0]; mods = last[1:]
        self.ops, self.mods = ops, mods
        self.w, self.r = set(), set()
        self.srcc, self.srcab = set(), set()
        self.passes = 0; self.ws = 1; self.lds_dma = False; self.wide_store = set(); self.dpp = False
        op = self.op
        op = re.sub(r"_(e32|e64|dpp|sdwa)$", "", op)
        R = lambda i: regs_of(ops[i]) if i < len(ops) else set()
        if op.startswith("v_mfma"):
            self.kind = "mfma"
            self.w = R(0); self.srcab = R(1) | R(2); self.srcc = R(3); self.r = self.srcab | self.srcc
            self.passes = 8 if "32x32" in op else 4
        elif op.startswith("v_"):
            self.kind = "trans" if op in TRANS else "valu"
            self.dpp = any(m.startswith(("quad_perm", "row_", "wave_", "row_bcast")) for m in mods) or self.op.endswith("_dpp")
            if op.startswith("v_cmp"):
                self.w = R(0); self.r = R(1) | R(2)
                if op.startswith("v_cmpx"): self.w |= {("x", "exec")}
            elif op in ("v_readfirstlane_b32", "v_readlane_b32"):
                self.w = R(0); self.r = R(1) | R(2)
            elif op.startswith("v_permlane") and "swap" in op:
                self.w = R(0) | R(1); self.r = R(0) | R(1)
            elif op in ("v_add_co_u32", "v_sub_co_u32", "v_addc_co_u32", "v_subb_co_u32", "v_mad_u64_u32"):
                self.w = R(0) | R(1); self.r = set().union(*[R(i) for i in range(2, len(ops))])
            elif op == "v_nop":
                pass
            else:
                self.w = R(0); self.r = set().union(*[R(i) for i in range(1, len(ops))]) if len(ops) > 1 else set()
                if op.startswith(("v_fmac", "v_pk_fmac", "v_dot2c", "v_writelane")) or self.dpp: self.r |= R(0)
                if op == "v_cndmask_b32" and len(ops) == 3: self.r |= {("x", "vcc")}
        elif op.startswith("ds_"):
            self.kind = "ds"
            if op.startswith(("ds_read", "ds_bpermute", "ds_permute", "ds_swizzle")):
                self.w = R(0); self.r = set().union(*[R(i) for i in range(1, len(ops))])
            else:
                self.r = set().union(*[R(i) for i in range(0, len(ops))])
        elif op.startswith(("buffer_", "global_")):
            self.kind = "vmem"
            if op in ("buffer_inv", "buffer_wbl2"):
                pass
            elif "lds" in mods or "_lds_" in op:
                self.lds_dma = True
                self.r = set().union(*[R(i) for i in range(0, len(ops))]) | {("x", "m0")}
            elif "_load_" in op:
                self.w = R(0); self.r = set().union(*[R(i) for i in range(1, len(ops))])
            elif "_store_" in op:
                self.r = set().union(*[R(i) for i in range(0, len(ops))])
                if op.endswith(("x3", "x4")):
                    self.wide_store = R(0) if op.startswith("buffer_") else R(1)
            elif "_atomic_" in op:
                self.r = set().union(*[R(i) for i in range(0, len(ops))])
                if "sc0" in mods:
                    self.w = R(0)
                    if op.startswith("global_"): self.r = set().union(*[R(i) for i in range(1, len(ops))])
            else:
                raise ValueError("vmem? " + text)
        elif op.startswith(("s_load", "s_buffer_load", "s_memtime", "s_memrealtime", "s_atomic")):
            self.kind = "smem"
            self.w = R(0); self.r = set().union(*[R(i) for i in range(1, len(ops))]) if len(ops) > 1 else set()
        elif op == "s_waitcnt":
            self.kind = "wait"
        elif op == "s_nop":
            self.kind = "nop"; self.ws = int(ops[0], 0) + 1
        elif op in ("s_barrier", "s_endpgm", "s_setprio", "s_sleep"):
            self.kind = "misc"
        elif op.startswith(("s_branch", "s_cbranch")):
            self.kind = "branch"
            if "vcc" in op: self.r = {("x", "vcc")}
            if "exec" in op: self.r = {("x", "exec")}
        elif op.startswith("s_"):
            self.kind = "salu"
            if op.startswith(("s_cmp", "s_bitcmp")):
                self.r = R(0) | R(1)
            elif op.startswith("s_getreg") or op.startswith("s_getpc"):
                self.w = R(0)
            elif op.startswith("s_setpc"):
                self.r = R(0)
            else:
                self.w = R(0); self.r = set().union(*[R(i) for i in range(1, len(ops))]) if len(ops) > 1 else set()
                if "saveexec" in op: self.w |= {("x", "exec")}; self.r |= {("x", "exec")}
                if op in ("s_addk_i32", "s_mulk_i32"): self.r |= R(0)
        else:
            raise ValueError("unknown instr: " + text)

def parse_wait(ins):
    vm = lg = None
    t = ins.text.split(";")[0]
    m = re.search(r"vmcnt\((\d+)\)", t); vm = int(m.group(1)) if m else None
    m = re.search(r"lgkmcnt\((\d+)\)", t); lg = int(m.group(1)) if m else None
    return vm, lg

_seen = set()
def check_trace(lines, name="trace", verbose=True):
    ins = []
    for l in lines:
        t = l.split(";")[0].strip()
        if not t or t.endswith(":") or t.startswith("."): continue
        ins.append(Ins(l.strip()))
    probs = []
    pos = [0]
    for i in ins: pos.append(pos[-1] + i.ws)
    def dist(a, b):
        return pos[b] - pos[a + 1]
    MAXD = 24
    T_ab = {2: 5, 4: 8, 8: 12, 16: 20}
    T_cov = {2: 4, 4: 6, 8: 10, 16: 18}
    T_war = {2: 1, 4: 3, 8: 7, 16: 15}
    isv = lambda s: {x for x in s if x[0] in "va"}
    iss = lambda s: {x for x in s if x[0] == "s" or x == ("x", "vcc")}
    for b, B in enumerate(ins):
        if B.kind in ("wait", "nop", "misc"): continue
        a = b - 1
        while a >= 0 and dist(a, b) < MAXD:
            A = ins[a]; d = dist(a, b); need = 0; why = ""
            def req(n, w):
                nonlocal need, why
                if n > need: need, why = n, w
            if A.kind in ("valu", "trans"):
                if B.kind == "mfma" and isv(A.w) & B.r: req(2, "valu->mfma")
                if A.op.startswith("v_dot") and isv(A.w) & (B.r | B.w):
                    same_c = B.op == A.op and not (A.w & (regs_of(B.ops[1]) | regs_of(B.ops[2])))
                    if not same_c: req(3, "dot->other")
                if A.kind == "trans" and B.kind == "valu" and A.w & B.r: req(1, "trans->valu")
                if B.kind in ("valu", "trans") and iss(A.w) & B.r:
                    req(4 if B.op.startswith(("v_readlane", "v_writelane")) and iss(A.w) & regs_of(B.ops[2]) else 2, "valu sgpr->valu")
                if B.kind == "vmem" and iss(A.w) & B.r: req(5, "valu sgpr->vmem")
                if B.op.startswith(("v_readfirstlane", "v_readlane")) and isv(A.w) & B.r: req(1, "valu->readlane")
                if B.op.startswith("v_permlane") and isv(A.w) & B.r: req(2, "valu->permlane")
                if B.dpp and isv(A.w) & B.r: req(2, "valu->dpp")
                if ("x", "exec") in A.w:
                    if B.kind == "mfma" or B.op.startswith(("v_readlane", "v_readfirstlane", "v_writelane", "v_permlane")): req(4, "cmpx")
                    if B.dpp: req(5, "cmpx->dpp")
                if any(m.startswith(("op_sel", "dst_sel")) for m in A.mods) and not A.op.startswith("v_pk") and B.kind in ("valu", "trans") and A.w & (B.r | B.w): req(1, "opsel")
            if A.kind == "mfma":
                p = A.passes
                if B.kind == "mfma":
                    if A.w & B.srcab: req(T_ab[p], "mfma D->mfma AB")
                    if A.w & B.srcc:
                        if not (A.w == B.srcc and A.passes == B.passes): req(T_cov[p], "mfma D->mfma C overlap")
                    elif A.w & B.w: req(T_cov[p], "mfma D->mfma D WAW (conservative)") if A.w != B.w else None
                elif B.kind in ("valu", "trans"):
                    if A.w & (B.r | B.w): req(T_ab[p], "mfma D->valu")
                    if A.srcc & B.w: req(T_war[p], "mfma C WAR valu")
                elif B.kind in ("ds", "vmem"):
                    if A.w & (B.r | B.w): req(T_ab[p], "mfma D->mem")
                    if A.srcc & B.w: req(T_war[p], "mfma C WAR load")
            if A.kind == "salu" and ("x", "m0") in A.w and B.lds_dma: req(1, "m0->dma")
            if A.wide_store and (A.wide_store & B.w): req(2 if B.kind in ("valu", "trans") else 1, "store WAR")
            if need > d:
                probs.append(f"{name}: HAZARD {why}: need {need} have {d}: [{a}] {A.text}  ->  [{b}] {B.text}")
            a -= 1
    vmq, lgq = [], []
    for i, I in enumerate(ins):
        if I.kind == "wait":
            vm, lg = parse_wait(I)
            if vm is not None:
                while len(vmq) > vm: vmq.pop(0)
            if lg is not None:
                if any(k == "smem" for _, _, k in lgq):
                    if lg == 0: lgq.clear()
                else:
                    while len(lgq) > lg: lgq.pop(0)
            continue
        touched = I.r | I.w
        for q in (vmq, lgq):
            for (j, w, k) in q:
                if w & touched:
                    if (w & I.r) or not ((I.kind == "ds" and k == "ds") or (I.kind == "vmem" and k == "vmem") or (I.kind == "smem" and k == "smem")):
                        probs.append(f"{name}: UNWAITED [{j}] {ins[j].text}  used by [{i}] {I.text}")
        if I.kind == "vmem":
            vmq.append((i, I.w, "vmem"))
            if len(vmq) > 63: probs.append(f"{name}: vmcnt overflow at [{i}] {I.text}")
        elif I.kind == "ds":
            lgq.append((i, I.w, "ds"))
        elif I.kind == "smem":
            lgq.append((i, I.w, "smem"))
    probs = [p for p in probs if re.sub(r"^\S+ |\[\d+\]", "", p) not in _seen]
    for p in probs: _seen.add(re.sub(r"^\S+ |\[\d+\]", "", p))
    if verbose:
        for p in probs[:40]: print(p)
        if len(probs) > 40: print("...", len(probs) - 40, "more")
    return probs

class Asm:
    def __init__(self):
        self.lines = []
    def __call__(self, s=""):
        for l in s.split("\n"):
            l = l.strip()
            if l: self.lines.append(l)
        return self
    def extend(self, ls):
        for l in ls: self(l)
    def text(self):
        out = []
        for l in self.lines:
            if l.endswith(":") or l.startswith("."): out.append(l)
            else: out.append("    " + l)
        return "\n".join(out) + "\n"

def vr(b, n=1, c="v"):
    return f"{c}{b}" if n == 1 else f"{c}[{b}:{b+n-1}]"
def ar(b, n=1): return vr(b, n, "a")
def sr(b, n=1): return vr(b, n, "s")

def auto_lgkm(lines_cyc, group=1):
    out, q = [], []
    for l in lines_cyc:
        t = l.split(";")[0].strip()
        if not t or t.endswith(":") or t.startswith("."):
            out.append(l); continue
        I = Ins(l)
        if I.kind == "wait":
            vm, lg = parse_wait(I)
            if lg is not None:
                while len(q) > lg: q.pop(0)
            out.append(l); continue
        touched = I.r | (I.w if I.kind != "ds" else set())
        need = -1
        for j, w in enumerate(q):
            if w & touched: need = j
        if need >= 0:
            n = len(q) - need - 1
            n = min(n, 15)
            out.append(f"s_waitcnt lgkmcnt({n})")
            while len(q) > n: q.pop(0)
        if I.kind == "ds": q.append(I.w)
        out.append(l)
    return out


class WState:
    def __init__(self):
        self.vm = []
        self.lg = []
    def copy(self):
        s = WState(); s.vm = list(self.vm); s.lg = list(self.lg); return s

def resolve(lines, st):
    out = []
    def emit_wait(vm, lg):
        if vm is None and lg is None: return
        if out and out[-1].startswith("s_waitcnt"):
            pv, pl = parse_wait(Ins(out[-1]))
            vm = pv if vm is None else (vm if pv is None else min(vm, pv))
            lg = pl if lg is None else (lg if pl is None else min(lg, pl))
            out.pop()
        t = "s_waitcnt"
        if vm is not None: t += f" vmcnt({vm})"
        if lg is not None: t += f" lgkmcnt({lg})"
        out.append(t)
    def need(regs, skip_ds=False, skip_vm=False):
        vm = lg = None
        if not skip_vm:
            k = -1
            for j, (w, _) in enumerate(st.vm):
                if w & regs: k = j
            if k >= 0:
                vm = min(len(st.vm) - k - 1, 63); del st.vm[:len(st.vm) - vm]
        if not skip_ds:
            k = -1
            for j, (w, _) in enumerate(st.lg):
                if w & regs: k = j
            if k >= 0:
                if any(kind == "smem" for _, kind in st.lg): lg = 0
                else: lg = min(len(st.lg) - k - 1, 15)
                del st.lg[:len(st.lg) - lg]
        emit_wait(vm, lg)
    for l in lines:
        t = l.split(";")[0].strip()
        if not t or t.endswith(":") or t.startswith("."):
            out.append(l); continue
        if t.startswith("@need"):
            regs = set()
            for tok in t.split()[1:]: regs |= regs_of(tok)
            need(regs); continue
        if t.startswith("@vm"):
            tag = t.split()[1]; k = -1
            for j, (_, tg) in enumerate(st.vm):
                if tg == tag: k = j
            if k >= 0:
                vm = min(len(st.vm) - k - 1, 63); del st.vm[:len(st.vm) - vm]; emit_wait(vm, None)
            continue
        if t.startswith("@lgw"):
            k = -1
            for j, (w, kind) in enumerate(st.lg):
                if not w: k = j
            if k >= 0:
                lg = 0 if any(kind == "smem" for _, kind in st.lg) else min(len(st.lg) - k - 1, 15)
                del st.lg[:len(st.lg) - lg]; emit_wait(None, lg)
            continue
        if t.startswith("@lg0"):
            if st.lg: st.lg.clear(); emit_wait(None, 0)
            continue
        I = Ins(l)
        if I.kind == "wait":
            vm, lg = parse_wait(I)
            if vm is not None and len(st.vm) > vm: del st.vm[:len(st.vm) - vm]
            if lg is not None:
                if any(kind == "smem" for _, kind in st.lg):
                    if lg == 0: st.lg.clear()
                elif len(st.lg) > lg: del st.lg[:len(st.lg) - lg]
            emit_wait(vm, lg); continue
        need(I.r)
        need(I.w, skip_ds=(I.kind in ("ds", "smem")), skip_vm=(I.kind == "vmem"))
        if I.kind == "vmem":
            if len(st.vm) >= 62:
                del st.vm[:len(st.vm) - 48]; emit_wait(48, None)
            m = re.search(r";\s*#(\S+)", l)
            st.vm.append((I.w, m.group(1) if m else None))
        elif I.kind == "ds": st.lg.append((I.w, "ds"))
        elif I.kind == "smem": st.lg.append((I.w, "smem"))
        out.append(l)
    return out

def vcost(x):
    op = x.split()[0]
    if ";!" in x: return 2
    if op.startswith("@") or op.endswith(":"): return 0
    if op.startswith("s_cbranch") or op == "s_nop": return 1
    if op.startswith("s_"): return 0
    if op.startswith(("buffer_", "global_", "ds_write")): return 2
    if op in TRANS or op.startswith("v_permlane"): return 2
    return 1

def grank(x):
    op = x.split()[0]
    if ";!" in x: return 2
    if op.startswith("@") or op == "s_waitcnt": return 0
    if op.startswith("s_cbranch") or op.endswith(":") or op == "s_barrier": return 4
    if op == "s_nop": return 3
    if op.startswith("s_"): return 1
    if op.startswith(("ds_", "buffer_", "global_")): return 2
    return 3

def spread(gaps, stream, glist, force=False):
    cap = [2 - sum(vcost(x) for x in gaps[g]) for g in glist]
    hasv = [any(grank(x) == 3 for x in gaps[g]) for g in glist]
    need = sum(vcost(x) for x in stream)
    tot = sum(max(c, 0) for c in cap)
    best = None
    for pc in range(min(100, int(100 * need / max(tot, 1))), 101):
        pace = pc / 100
        k = 0; done = 0; cum = 0.0; out = [[] for _ in glist]
        for n, g in enumerate(glist):
            cum += max(cap[n], 0) * pace; c = cap[n]; hv = hasv[n]
            while k < len(stream) and vcost(stream[k]) <= c and (done < cum or pc == 100):
                r = grank(stream[k])
                if r == 2 and hv: break
                if r == 3: hv = True
                out[n].append(stream[k]); c -= vcost(stream[k]); done += vcost(stream[k]); k += 1
        best = (out, k)
        if k == len(stream): break
    out, k = best
    if k < len(stream) and not force: raise Exception(f"no fit: {len(stream)-k} left")
    for n, g in enumerate(glist): gaps[g] += out[n]
    return stream[k:]

def weave(mf, gaps):
    out = []
    for i in range(len(gaps)):
        if mf[i]: out.append(mf[i])
        for x in sorted(gaps[i], key=grank): out += x.replace(" ;!", "").split("\n")
    return out
```

```python
import sys, struct
from asmlib import *

KN = "standalone__conformer_family_branchformer__speech_kernel"
MF = "v_mfma_f32_16x16x32_bf16"
FLAG_XA = 0x1000; FLAG_FOLD = 0x9000; FLAG_M = 0xa000; FLAG_XCH = 0x24000
XA = 1 << 20; M_F = 6 << 20; WU_F = M_F + 0x20000; WD_F = M_F + 0x40000; WV_F = M_F + 0x60000; DW_F = M_F + 0x80000
XCH = 8 << 20; WS_USED = 16 << 20; GP = 16 << 20; PLANE = 32000; TS_OFF = 100 << 20
GB = 24576
REG = 40960
def f2u(x): return struct.unpack("<I", struct.pack("<f", x))[0]
LOG2E = 1.4426950408889634
ALPHA = (LOG2E / 16) ** 0.5

pX, pWq, pWk, pWv, pWao, pWup, pDw, pWdn, pWm, pOut, pDbg, pWs = range(4, 28, 2)
sX, sWq, sWk, sWS, sXA, sOut = 28, 32, 36, 40, 44, 48
sUp, sGP = sWq, sWk
sGf = 83
sWave, sB, sHalf, sTown, sTag, sLds = 52, 53, 54, 55, 56, 57
sG = [58, 60]; sThi, sTlo, sN15, sTile, sT0, sMask, s4096, s16k = 62, 63, 64, 65, 66, 67, 68, 69
t0, t1, t2, t3 = 70, 71, 72, 73
sP0, sP1, sFirst, sRedo, sRet, sCnt, sWoff, sXo = 74, 75, 76, 77, 78, 80, 81, 82
STAMPS = list(range(84, 102, 2)) + [4, 6, 8, 10, 20, 22, 24, 26]
vLane, vK, vV, vD, vPoll, vT0, vL, vTS, vC, vF, vS = 1, 2, 3, [4, 5], 6, 7, 8, 12, 16, 32, [64, 96]
NF = 8
def Oreg(q, n): return ("v", 128 + 64 * q + 4 * n) if q < 2 else ("a", 128 + 64 * (q - 2) + 4 * n)
def R4(c, b): return f"{c}[{b}:{b+3}]"
def R2(c, b): return f"{c}[{b}:{b+1}]"
def srd(d, lo, hi, n): return [f"s_mov_b32 s{d}, {lo}", f"s_mov_b32 s{d+1}, {hi}", f"s_mov_b32 s{d+2}, {n}", f"s_mov_b32 s{d+3}, 0x20000"]
S = lambda d: f"s[{d}:{d+3}]"

class Gen:
    def __init__(self, stamps=False, D=4, order=3, thi=2.0**60, tlo=2.0**-60, pollstep=4, npre=2, nln=12, wqevery=8, wqskip=0, npub=0, nb1=(4, 4), nst6=2, flagstep=6, cyc=False, tlb=False, pfirst=True, pfq=True, touch=False, warm=False, xflag=-1, mcheck=0, nm=6, nm2=12, pollissue=1, foldpf=True, amp=None, mflag=0, mpoll=34, mper=(1, 1, 2), xpoll=8, xcheck=56, pcheck=10, nwv0=4, nwdlate=0, outflag='', gsteps=(24, 25, 26, 27), xfirst=False, lite=False, remap=True, xsat=0, diag=0, kpre=0, aluper=10, mfl=-1, mcheckg=0, xpollg=-1, rstop=128):
        self.mcheckg, self.xpollg, self.rstop = mcheckg, xpollg, rstop
        self.kpre, self.aluper, self.mfl = kpre, aluper, mfl
        self.diag = diag
        self.remap, self.xsat = remap, xsat
        self.lite = lite
        self.gsteps, self.xfirst = gsteps, xfirst
        self.pcheck, self.nwv0, self.outflag = pcheck, nwv0, outflag; self.nwdlate = nwdlate
        self.mflag, self.mpoll, self.mper, self.xpoll, self.xcheck = mflag, mpoll, mper, xpoll, xcheck
        self.amp = amp
        self.foldpf = foldpf
        self.pollissue = pollissue
        self.xflag, self.mcheck, self.nm, self.nm2 = xflag, mcheck, nm, nm2
        self.warm = warm
        self.pfirst, self.pfq, self.touch = pfirst, pfq, touch
        self.tlb = tlb; self.wqevery = wqevery; self.wqskip, self.npub, self.nb1, self.nst6 = wqskip, npub, nb1, nst6
        self.npre, self.nln, self.flagstep, self.cyc = npre, nln, flagstep, cyc
        self.stamps, self.D, self.order, self.thi, self.tlo, self.pollstep = stamps, D, order, thi, tlo, pollstep
        self.nst = 0; self.stnames = []
        self.stubs = []
    def stamp(self, name):
        if not self.stamps or (name not in self.stamps and name not in ("start", "end")): return []
        if name in self.stnames: r = STAMPS[self.stnames.index(name)]
        else:
            r = STAMPS[self.nst]; self.nst += 1; self.stnames.append(name)
        return [f"s_mem{'' if self.cyc else 'real'}time s[{r}:{r+1}]"]

    def entry(self):
        L = []
        L += [f"s_cmp_ge_u32 s2, 256", "s_cbranch_scc1 L_end"]
        L += self.stamp("start")
        L += ["s_load_dwordx16 s[4:19], s[0:1], 0", "s_load_dwordx8 s[20:27], s[0:1], 64",
              "s_getpc_b64 s[70:71]", "L_pc:", "s_bfe_u32 s72, s2, 0x30003", "s_lshl_b32 s72, s72, 13", "v_lshrrev_b32 v19, 2, v0", "v_lshlrev_b32 v19, 7, v19",
              "v_add_u32 v17, s72, v19", "v_min_u32 v17, L_end-L_pc, v17", "global_load_dword v128, v17, s[70:71]",
              "v_lshrrev_b32 v2, 6, v0", f"v_and_b32 v{vLane}, 63, v0", f"v_readfirstlane_b32 s{sWave}, v2", "s_mov_b32 s3, s2"] + ([
              "s_and_b32 s72, s3, 7", "s_lshl_b32 s72, s72, 1", "s_bfe_u32 s73, s3, 0x10003", "s_and_b32 s2, s3, 0xf0", "s_or_b32 s2, s2, s72", "s_or_b32 s2, s2, s73"] if self.remap else []) + [
              f"v_and_b32 v8, 15, v{vLane}",
              f"v_lshrrev_b32 v9, 4, v{vLane}",
              f"v_bfe_u32 v10, v{vLane}, 4, 1", f"v_lshrrev_b32 v11, 5, v{vLane}",
              "v_lshl_add_u32 v10, v10, 1, v11",
              f"s_mul_i32 s{sLds}, s{sWave}, {REG}",
              f"s_mov_b32 s{sMask}, 0xffff0000", f"s_movk_i32 s{s4096}, 4096", f"s_movk_i32 s{s16k}, 16384",
              f"s_and_b32 s{sHalf}, s2, 1", f"s_bfe_u32 s{sB}, s2, 0x10001",
              f"s_lshr_b32 s{t0}, s2, 2", f"s_lshl_b32 s{t0}, s{t0}, 1", f"s_add_u32 s{sTown}, s{t0}, s{sHalf}",
              f"s_lshr_b32 s{t1}, s{sWave}, 1", f"s_xor_b32 s{t1}, s{t1}, 1", f"s_xor_b32 s{sTile}, s{sTown}, s{t1}",
              f"s_and_b32 s{t1}, s{sWave}, 1", f"s_lshl_b32 s{t2}, s{sTile}, 1", f"s_add_u32 s{t2}, s{t2}, s{t1}", f"s_lshl_b32 s{t2}, s{t2}, 13",
              f"v_xor_b32 v16, v{vLane}, v11", "v_lshlrev_b32 v13, 4, v16", f"v_add_u32 v144, s{t2}, v13"] + [f"v_xor_b32 v{144+p}, {p*32}, v144" for p in range(1, 8)] + [
              f"v_lshrrev_b32 v16, 3, v{vLane}", f"v_and_b32 v17, 7, v{vLane}", "v_and_b32 v18, 2, v16", "v_xor_b32 v17, v17, v18",
              "v_lshlrev_b32 v16, 10, v16", f"v_lshl_add_u32 v14, v17, 4, v16", f"s_lshl_b32 s{t3}, s{sWave}, 7", f"s_add_u32 s{t3}, s{t3}, 512",
              f"v_add_u32 v137, s{t3}, v14",
              f"s_lshl_b32 s{t3}, s{sWave}, 6", f"v_xor_b32 v16, s{t3}, v13", f"s_lshl_b32 s{t3}, s{sWave}, 12", f"v_add_u32 v16, s{t3}, v16",
              f"s_and_b32 s{t3}, s2, 7", f"s_lshl_b32 s{t3}, s{t3}, 14", f"v_add_u32 v164, s{t3}, v16", "v_xor_b32 v165, 32, v164",
              f"s_bfe_u32 s{t3}, s2, 0x30004", f"s_lshl_b32 s{t3}, s{t3}, 14", f"s_bfe_u32 s{t2}, s2, 0x10003", f"s_lshl_b32 s{t2}, s{t2}, 11", f"s_add_u32 s{t3}, s{t3}, s{t2}",
              f"v_add_u32 v188, s{t3}, v16", "v_xor_b32 v189, 32, v188",
              "s_waitcnt lgkmcnt(0)"] + self.stamp("karg") + [
              f"s_load_dword s{sTag}, s[{pWs}:{pWs+1}], 0"]
        if self.tlb:
            for ptr, off in ((pWq, 0), (pWk, 0), (pOut, 0), (pOut, 2 << 20)):
                L += [f"s_mov_b32 s{t0}, {off}", f"s_load_dword s83, s[{ptr}:{ptr+1}], s{t0}"]
            for k in range(1, 8): L += [f"s_mov_b32 s{t0}, {k << 21}", f"s_load_dword s83, s[{pWs}:{pWs+1}], s{t0}"]
        L += srd(sWS, f"s{pWs}", f"s{pWs+1}", 0x10000000 if self.stamps and not self.amp else WS_USED)
        L += ["s_cmp_ge_u32 s2, 252", "s_cbranch_scc1 L_fold"]
        return L
    def tagcalc(self):
        return [f"@need s{sTag}", f"s_mul_i32 s{sTag}, s{sTag}, 1664525", f"s_add_u32 s{sTag}, s{sTag}, 1013904223"]

    def dma(self, G, NT=16):
        if G >= NT * 16: return [], [], []
        slot = (G % 40) * 1024; h = (G >> 3) & 1; jj = (G >> 2) & 1
        pre = [f"s_add_u32 m0, s{sLds}, {slot + 4096}"] if G % 8 == 0 else []
        ld = [f"global_load_lds_dwordx4 v{vD[jj]}, s[{sG[h]}:{sG[h]+1}] offset:{(G%8)*1024 - 4096} sc1 ;#p{G}"]
        post = [f"s_add_u32 s{sG[h]}, s{sG[h]}, 16384", f"s_addc_u32 s{sG[h]+1}, s{sG[h]+1}, 0"] if G % 8 == 7 else []
        return pre, ld, post
    def front(self):
        L = []
        vSt, vWa, vWb = 26, 27, 28
        vTr = [2, 3, 4, 5]; vAbs = [8, 9, 10, 11]; vR = [12, 13, 14, 15]
        DM = 12
        MI, STF = 26624, 31744
        sMo, sMf = sP0, sP1
        mi = [f"s_add_u32 m0, s{sLds}, {MI}", "s_nop 0"] + [f"global_load_lds_dwordx4 v{164+(i&1)}, s[{pWq}:{pWq+1}] offset:{i*1024} ;#mi" for i in range(4)]
        mi += [f"s_add_u32 m0, s{sLds}, {MI+4096}", "s_nop 0"] + [f"global_load_lds_dwordx4 v{188+i}, s[{pWk}:{pWk+1}] offset:{i*1024} ;#mi" for i in range(2)]
        xl = [f"s_mul_i32 s{t3}, s{sB}, 2048000", f"s_add_u32 s{sX}, s{pX}, s{t3}", f"s_addc_u32 s{sX+1}, s{pX+1}, 0", f"s_mov_b32 s{sX+2}, 2048000", f"s_mov_b32 s{sX+3}, 0x20000"]
        for i in range(8):
            if i % 4 == 0: xl += [f"s_add_u32 m0, s{sLds}, {32768 + i*1024}", "s_nop 0"]
            xl.append(f"buffer_load_dwordx4 v{144+i}, {S(sX)}, {'s%d' % s4096 if i >= 4 else '0'} offen offset:{(i&3)*1024} lds ;#x")
        pf = srd(sUp, f"s{pWup}", f"s{pWup+1}", 262144)
        pf += ["s_bfe_u32 s73, s3, 0x40003", "s_lshl_b32 s73, s73, 14", "v_lshrrev_b32 v139, 9, v19", "v_lshl_add_u32 v139, v139, 9, v19",
               f"buffer_load_dword v130, v139, {S(sUp)}, s73 offen offset:512"]
        vQ4 = [137, 132, 133, 134]
        pf += ["v_add_u32 v132, 7168, v137", "v_xor_b32 v139, 64, v137", "v_add_u32 v133, 14336, v139", "v_add_u32 v134, 21504, v139"]
        def wq2(p):
            pre = [f"s_add_u32 m0, s{sLds}, {p*1024}", f"s_mov_b32 s{sWoff}, {p*8192}"] if p % 4 == 0 else []
            return pre, [f"buffer_load_dwordx4 v{vQ4[p & 3]}, {S(sUp)}, s{sWoff} offen offset:{(p&3)*1024} lds ;#wq{p}"]
        def wq(p): return wq2(p)[0] + wq2(p)[1]
        NPRE = self.npre
        alu = []
        alu += [f"s_mul_i32 s{t0}, s{sB}, 2048000", f"s_add_u32 s{sOut}, s{pOut}, s{t0}", f"s_addc_u32 s{sOut+1}, s{pOut+1}, 0",
              f"s_mov_b32 s{sOut+2}, 2048000", f"s_mov_b32 s{sOut+3}, 0x20000",
              f"s_add_u32 s{t0}, s{t0}, {XA}", f"s_add_u32 s{sXA}, s{pWs}, s{t0}", f"s_addc_u32 s{sXA+1}, s{pWs+1}, 0",
              f"s_mov_b32 s{sXA+2}, 2048000", f"s_mov_b32 s{sXA+3}, 0x20000", "|",
              f"s_mul_i32 s{sT0}, s{sHalf}, 63", f"s_lshl_b32 s{t0}, s{sWave}, 4", f"s_add_u32 s{sT0}, s{sT0}, s{t0}",
              f"s_add_u32 s{t0}, s{sWave}, s{sHalf}", f"s_cmp_ge_u32 s{t0}, 3", f"s_cselect_b32 s{sN15}, 1, 0",
              f"s_cmp_eq_u32 s{t0}, 4", f"s_cselect_b32 s{t0}, 1, 0", f"s_sub_u32 s{sT0}, s{sT0}, s{t0}", "|",
              f"s_lshl_b32 s{t0}, s{sT0}, 14", f"s_lshr_b32 s{t1}, s{sWave}, 1", f"s_lshl_b32 s{t1}, s{t1}, 13",
              f"s_add_u32 s{t2}, s{t0}, s{t1}", f"s_add_u32 s{sG[0]}, s{sXA}, s{t2}", f"s_addc_u32 s{sG[0]+1}, s{sXA+1}, 0",
              f"s_xor_b32 s{t2}, s{t2}, 8192", f"s_add_u32 s{sG[1]}, s{sXA}, s{t2}", f"s_addc_u32 s{sG[1]+1}, s{sXA+1}, 0", "|",
              f"s_mov_b32 s{sThi}, {f2u(self.thi):#x}", f"s_mov_b32 s{sTlo}, {f2u(self.tlo):#x}", f"s_mov_b32 s{sRedo}, 0",
              ] + [x for r in range(4) for x in (f"s_mov_b32 s{DM+2*r}, {(0x100001 << r):#x}", f"s_mov_b32 s{DM+2*r+1}, {(0x10000100 << r):#x}")]
        alu += [f"v_lshlrev_b32 v16, 3, v11", "v_xor_b32 v16, v8, v16", "v_lshlrev_b32 v16, 4, v16", "v_lshl_add_u32 v29, v10, 9, v16", "|",
              f"s_and_b32 s{t1}, s{sWave}, 1", f"s_lshl_b32 s{t1}, s{t1}, 8", f"s_lshl_b32 s{t2}, s{sTile}, 14", f"s_add_u32 s{t1}, s{t1}, s{t2}",
              f"s_lshl_b32 s{t2}, s{sHalf}, 13", f"s_add_u32 s{t1}, s{t1}, s{t2}", f"v_add_u32 v{vSt}, s{t1}, v29", "|",
              f"s_lshl_b32 s{t2}, s{sHalf}, 12", f"s_add_u32 s{t2}, s{t2}, s{sLds}", f"s_add_u32 s{t2}, s{t2}, 32768",
              f"v_lshlrev_b32 v30, 4, v{vLane}", f"v_add_u32 v{vWa}, s{t2}, v30", f"v_xor_b32 v{vWb}, 4096, v{vWa}", "|",
              "v_xor_b32 v16, v10, v8", "v_lshlrev_b32 v16, 4, v16", "v_lshl_add_u32 v16, v8, 9, v16", f"s_lshl_b32 s{t2}, s{sHalf}, 8", f"s_add_u32 s{t2}, s{t2}, s{sLds}",
              f"v_add_u32 v152, s{t2}, v16"] + [f"v_xor_b32 v{152+p}, {p*64}, v152" for p in range(1, 8)] + ["|"]
        alu += ["v_lshrrev_b32 v16, 3, v8", "v_and_b32 v18, 2, v10", "v_or_b32 v16, v16, v18", "v_lshlrev_b32 v16, 5, v16",
              "v_bfe_u32 v18, v8, 1, 1", "v_lshl_add_u32 v16, v18, 4, v16", "v_and_b32 v18, 1, v8", "v_lshl_add_u32 v16, v18, 3, v16", "|",
              "v_lshrrev_b32 v18, 2, v8", "v_lshl_add_u32 v16, v18, 7, v16", "v_lshl_add_u32 v16, v10, 10, v16",
              f"v_add_u32 v{vTr[0]}, s{sLds}, v16"] + [f"v_xor_b32 v{vTr[e]}, {e*32}, v{vTr[0]}" for e in (1, 2, 3)] + ["|"]
        alu += [
              "v_bfe_u32 v16, v8, 2, 1", "v_bfe_u32 v17, v8, 3, 1", "v_lshl_add_u32 v16, v16, 1, v17", "v_and_b32 v17, 3, v8",
              "v_lshl_add_u32 v18, v16, 2, v17", "v_xor_b32 v18, v18, v9", "v_lshlrev_b32 v18, 4, v18", "v_lshl_add_u32 v18, v17, 9, v18",
              f"v_mul_u32_u24 v16, {REG}, v16", "v_add_u32 v160, v16, v18"] + [f"v_xor_b32 v{160+p}, {p*64}, v160" for p in range(1, 4)] + [
              f"s_bfe_u32 s{t0}, s2, 0x20005", f"s_lshl_b32 s{t0}, s{t0}, 3", f"s_and_b32 s{t1}, s2, 7", f"s_add_u32 s{t0}, s{t0}, s{t1}", f"s_bfe_u32 s{t1}, s2, 0x20003",
              f"s_lshl_b32 s{t2}, s{t0}, 2", f"s_add_u32 s{t2}, s{t2}, s{t1}", f"s_lshl_b32 s{t2}, s{t2}, 10", f"s_add_u32 s{sMo}, s{t2}, {M_F}",
              f"s_lshl_b32 s{t2}, s{t0}, 5", f"s_add_u32 s{t2}, s{t2}, s{t1}", f"s_lshl_b32 s{t2}, s{t2}, 2", f"s_add_u32 s{sMf}, s{t2}, {FLAG_M}",
              f"s_lshl_b32 s{t2}, s{sWave}, 28", f"s_add_u32 s{sMo}, s{sMo}, s{t2}", f"s_add_u32 s{sMf}, s{sMf}, s{t2}",
              f"v_bfe_u32 v16, v{vLane}, 2, 3", f"v_and_b32 v17, 3, v{vLane}", "v_lshl_add_u32 v16, v16, 5, v17", "v_lshlrev_b32 v16, 2, v16",
              f"s_lshl_b32 s{t2}, s{sWave}, 10", f"s_add_u32 s{t2}, s{t2}, {FLAG_M}", f"v_add_u32 v166, s{t2}, v16",
              f"s_mul_i32 s{t0}, s{sB}, {64*PLANE}", f"s_add_u32 s{t0}, s{t0}, {GP}", f"s_add_u32 s{sGP}, s{pWs}, s{t0}", f"s_addc_u32 s{sGP+1}, s{pWs+1}, 0",
              f"s_mov_b32 s{sGP+2}, {64*PLANE}", f"s_mov_b32 s{sGP+3}, 0x20000",
              f"s_mul_i32 s{t0}, s{sWave}, {16*PLANE}", f"s_lshl_b32 s{t1}, s{sTown}, 8", f"s_add_u32 s{t0}, s{t0}, s{t1}",
              f"s_cmp_gt_u32 s{sTown}, 124", f"s_cselect_b32 s{t0}, 0x40000000, s{t0}",
              f"v_mul_u32_u24 v16, {PLANE}, v9", "v_lshl_add_u32 v16, v8, 4, v16", f"v_add_u32 v167, s{t0}, v16",
              "v_lshrrev_b32 v16, 3, v8", f"v_mul_u32_u24 v16, {REG - 256}, v16", "v_lshl_add_u32 v16, v8, 5, v16", "v_lshl_add_u32 v16, v9, 8, v16", f"v_add_u32 v186, {2*REG}, v16",
              f"s_lshl_b32 s{t2}, s{sB}, 7", f"s_add_u32 s{t2}, s{t2}, s{sTown}", f"s_lshl_b32 s{t2}, s{t2}, 5", f"s_add_u32 s{t2}, s{t2}, s{sWave}",
              f"s_lshl_b32 s{t2}, s{t2}, 2", f"s_add_u32 s{sGf}, s{t2}, {FLAG_XA + 16}",
              f"v_lshrrev_b32 v16, 2, v{vLane}", f"s_sub_u32 s{t2}, 15, s{sN15}", f"v_min_u32 v16, s{t2}, v16",
              f"s_lshl_b32 s{t2}, s{sB}, 7", f"s_add_u32 s{t2}, s{t2}, s{sT0}", f"v_add_u32 v16, s{t2}, v16", "|",
              f"v_and_b32 v18, 3, v{vLane}", "v_lshl_add_u32 v16, v16, 5, v18", "v_lshlrev_b32 v16, 2, v16", f"v_add_u32 v{vPoll}, {FLAG_XA}, v16",
              "|",
              f"s_lshl_b32 s{t2}, s{sB}, 7", f"s_add_u32 s{t2}, s{t2}, s{sTile}", f"s_lshl_b32 s{t2}, s{t2}, 5",
              f"s_and_b32 s{t1}, s{sWave}, 1", f"s_lshl_b32 s{t1}, s{t1}, 1", f"s_add_u32 s{t2}, s{t2}, s{t1}", f"s_add_u32 s{t2}, s{t2}, s{sHalf}",
              f"s_lshl_b32 s{t2}, s{t2}, 2", f"s_add_u32 s{sXo}, s{t2}, {FLAG_XA}", "|"]
        alu += [f"v_add_u32 v{vAbs[j]}, {j*REG}, v30" for j in range(4)] + [f"v_mov_b32 v{20+r}, 0x3f803f80" for r in range(4)]
        for j in range(4): alu += [f"s_xor_b32 s{t1}, s{sWave}, {j}", f"s_mul_i32 s{t1}, s{t1}, {REG}", f"v_add_u32 v{vR[j]}, s{t1}, v30"]
        alu += [f"v_lshlrev_b32 v16, 3, v{vLane}"] + [f"v_sub_u32 v{180+j}, v{vR[j]}, v16" for j in range(4)]
        rest = list(range(32))
        assert self.kpre % 4 == 0
        first = pf + mi + [x for _ in range(self.kpre) for x in wq(rest.pop(0))] + xl + self.stamp("xiss") + [x for _ in range(NPRE) for x in wq(rest.pop(0))]
        alu = [x for x in alu if x != "|"]
        nv = 0
        for x in first:
            L.append(x)
            if x.startswith(("buffer_", "global_")):
                nv += 1
                if nv > 2:
                    k = min(self.aluper, len(alu))
                    while k < len(alu) and alu[k].startswith(("s_addc", "s_cselect")): k += 1
                    L += alu[:k]; alu = alu[k:]
        if self.diag == 1: L += ["@vm mi"] + self.stamp("mi0") + ["@vm x"] + self.stamp("x0")
        print("   alu left", len(alu))
        L += alu + self.stamp("alu")
        L += self.tagcalc() + [f"v_mov_b32 v7, s{sTag}", "s_mov_b32 vcc_lo, 0xf0000f", "s_mov_b32 vcc_hi, 0xf0000f00"] + self.stamp("tag")
        L += ["@vm mi"] + self.stamp("mi") + ["s_barrier"] + self.stamp("b0")
        mrd = lambda ks: [f"ds_read_b128 {R4('a', 12*ks+4*k)}, v{160+(ks&3)} offset:{MI + k*2048 + (ks>>2)*256}" for k in range(3)]
        L += [x for ks in range(4) for x in mrd(ks)]
        for ks in range(8):
            for hb in range(2):
                L.append(f"{MF} {R4('v', 168+4*hb)}, {R4('a', 12*ks+4*hb)}, {R4('a', 12*ks+8)}, {R4('v', 168+4*hb) if ks else '0'}")
            if ks < 4: L += mrd(ks + 4)
            elif len(rest) > 32 - self.nm: L += wq(rest.pop(0))
        L += ["s_barrier", "s_nop 5"]
        L += [f"v_cvt_pk_bf16_f32 v{176+k}, v{168+2*k}, v{169+2*k}" for k in range(4)]
        L += [f"buffer_store_dwordx4 v[176:179], v30, {S(sWS)}, s{sMo} offen sc1 ;#mst"] + self.stamp("mst")
        while len(rest) > 32 - self.nm2: L += wq(rest.pop(0))
        L += ["@vm x"] + self.stamp("x")
        L += [f"ds_read_b128 {R4('v', 32+4*i)}, v{152+i} offset:32768" for i in range(8)]
        ln = []
        for i in range(8):
            X = R4("v", 32 + 4 * i)
            un = []
            for r in range(4):
                x = 32 + 4 * i + r; d = 64 + 8 * i + 2 * r
                un += [f"v_lshlrev_b32 v{d}, 16, v{x}", f"v_and_b32 v{d+1}, s{sMask}, v{x}"]
            a_ = f"{MF} v[140:143], {X}, {X}, {'0' if i == 0 else 'v[140:143]'}"; b_ = f"{MF} v[16:19], v[20:23], {X}, {'0' if i == 0 else 'v[16:19]'}"
            ln += [a_, b_] + un if i == 7 else [a_] + un[:4] + [b_] + un[4:]
        ln += [f"v_cndmask_b32 v18, v141, v140, s[{DM}:{DM+1}]", f"v_cndmask_b32 v18, v18, v142, s[{DM+4}:{DM+5}]", f"v_cndmask_b32 v18, v18, v143, s[{DM+6}:{DM+7}]",
               f"v_cndmask_b32 v18, 0, v18, vcc", f"v_mul_f32 v16, {f2u(-1/256):#x}, v16", "v_mov_b32 v19, v18", f"v_mul_f32 v17, {f2u(16.0):#x}, v16",
               "v_mul_f32 v17, v17, v17", "v_permlane32_swap_b32 v19, v18", "v_add_f32 v18, v18, v19", "v_mov_b32 v19, v18", f"v_mov_b32 v20, {f2u(1e-5 / ALPHA**2):#x}", "s_nop 0",
               "v_permlane16_swap_b32 v19, v18", "v_add_f32 v18, v18, v19", "v_sub_f32 v18, v18, v17", "v_max_f32 v18, 0, v18",
               f"v_fmamk_f32 v18, v18, {f2u(1/256 / ALPHA**2):#x}, v20", "v_rsq_f32 v18, v18", "s_nop 0", "v_mul_f32 v19, v16, v18"]
        pub = []
        for i in range(8):
            for r in range(4):
                d = 64 + 8 * i + 2 * r
                pub.append(f"v_pk_fma_f32 {R2('v', d)}, {R2('v', d)}, v[18:19], v[18:19] op_sel:[0,0,1] op_sel_hi:[1,0,1]")
            for r in range(4):
                d = 64 + 8 * i + 2 * r
                pub.append(f"v_cvt_pk_bf16_f32 v{32+4*i+r}, v{d}, v{d+1}")
            if i < 4: pub.append(f"buffer_store_dwordx4 {R4('v', 32+4*i)}, v{vSt}, {S(sXA)}, {'s%d' % s4096 if i >= 2 else '0'} offen offset:{(i&1)*2048} sc1 ;#xast")
            pub.append(f"ds_write_b128 v{vWa if i < 4 else vWb}, {R4('v', 32+4*i)} offset:{(i&3)*1024}")
        out = []; k = -self.wqskip; n1 = self.nln
        for n_, x in enumerate(ln):
            out.append(x); k += 1
            if n_ == self.mfl: out += ["@vm mst"] + self.flagstore(7, sMf, True)
            if k >= self.wqevery and n1 and rest and x.startswith("v_") and not x.startswith(("v_mfma", "v_rsq")): out += wq(rest.pop(0)); k = 0; n1 -= 1
        out += self.stamp("ln")
        xst = [x for x in pub if x.startswith("buffer_store")]
        nw = 0; n2 = self.npub
        if self.mflag == 0: out += ["@vm mst"] + self.flagstore(7, sMf, True)
        for x in pub:
            if x in xst: continue
            out.append(x)
            if x.startswith("ds_write"):
                nw += 1
                if n2 and rest: out += wq(rest.pop(0)); n2 -= 1
                if nw > self.xsat and xst: out.append(xst.pop(0))
                if nw == self.mflag: out += ["@vm mst"] + self.flagstore(7, sMf, True)
        for _ in range(self.nb1[0]):
            if rest: out += wq(rest.pop(0))
        if self.mflag > 8: out += ["@vm mst"] + self.flagstore(7, sMf, True)
        L += out + xst + self.stamp("pubx")
        Breg = lambda s, qb: 128 + (s * 4 + qb) * 4
        bread = lambda s, qb: f"ds_read_b128 {R4('a', Breg(s, qb))}, v{vAbs[qb]} offset:{32768 + s*1024}"
        Areg = lambda s, e: 64 + 16 * (s % 3) + 4 * e
        gacc = lambda eb, rb: 192 + (rb * 4 + eb) * 4
        def ga(s): return [[f"ds_read_b64_tr_b16 {R2('v', Areg(s, eb)+2*j)}, v{vTr[eb]} offset:{s*4096 + j*512}" for j in range(2)] for eb in range(4)]
        L += ["@vm wq7"] + [x for s_ in range(2) for y in ga(s_) for x in y]
        Greg = lambda s, rb: (48, 56, 112)[s % 3] + 4 * rb
        gread = lambda s, rb: f"ds_read_b128 {R4('v', Greg(s, rb))}, v186 offset:{32768 + s*1024 + rb*16}"
        L += ["@lg0", "s_barrier"] + self.stamp("b1") + [gread(s_, rb) for s_ in range(2) for rb in range(2)]
        for _ in range(self.nb1[1]):
            if rest: L += wq(rest.pop(0))
        mf = []; gaps = [[] for _ in range(64)]
        for s in range(8):
            for eb in range(4):
                for rb in range(2):
                    mf.append(f"{MF} {R4('v', gacc(eb, rb))}, {R4('v', Areg(s, eb))}, {R4('v', Greg(s, rb))}, {R4('v', gacc(eb, rb)) if s else '0'}")
            g = 8 * s
            for pos in (2, 6):
                if rest:
                    pre, ld = wq2(rest.pop(0)); gaps[g + pos - 1] += pre; gaps[g + pos] += ld
            if s < 6:
                assert not rest or rest[0] > 4 * s + 11 + 2, (s, rest)
                r = ga(s + 2); gaps[g].append(f"@vm wq{4*s+11}")
                for n, pos in enumerate((0, 3, 4, 5)): gaps[g + pos] += r[n]
                gaps[g + 1] += [gread(s + 2, 0), gread(s + 2, 1)]
            if s == self.flagstep: gaps[g + 6] += ["@vm xast"] + self.flagstore(7, sXo)
            if s < 7: gaps[g + 7].append(f"@need v[{Areg(s+1,0)}:{Areg(s+1,0)+15}] v[{Greg(s+1,0)}:{Greg(s+1,0)+7}]")
        assert not rest
        gaps[self.mpoll].append(f"buffer_load_dword v25, v166, {S(sWS)}, 0 offen sc1")
        c0 = -2 * 0.7978845608028654 * LOG2E / ALPHA; c1 = c0 * 0.044715 / ALPHA ** 2
        gaps[56] += [f"v_mov_b32 v16, {f2u(c0):#x}", f"v_mov_b32 v17, {f2u(c1):#x}"]
        mq = [self.wload("a", 4 * n, n, 30) for n in range(32)]
        gm = self.mcheckg if self.mcheckg else 55
        gaps[gm] += [f"s_lshl_b32 s{sWoff}, s{sWave}, 15", f"s_add_u32 s{sWoff}, s{sWoff}, {M_F}"]
        if self.mcheckg:
            assert gm % 8 == 7 and not gaps[gm - 1]
            gaps[gm - 1] += ["@need v25", f"v_cmp_ne_u32 vcc, s{sTag}, v25"]
            gaps[gm] += ["s_cbranch_vccnz L_spin_m", "L_back_m:"]; gaps[gm + 1] += self.stamp("mseen")
            for g in range(gm + 3, 64, 4):
                if not gaps[g]:
                    ld, post = mq.pop(0); gaps[g] += ld; gaps[g + 1] += post
        bq = [bread(s_, qb) for s_ in range(8) for qb in range(4)]
        for g in (48, 49, 51, 52, 57, 59, 60, 61):
            gaps[g] += bq[:2]; bq = bq[2:]
        L += weave(mf, gaps) + self.stamp("gg")
        self.stubs.append(self.spin("m", 166, 25))
        def mnext(n):
            o = []
            for _ in range(n):
                if mq: ld, post = mq.pop(0); o += ld + post
            return o
        def ex_g(k, d):
            slot = (d - 192) // 8 * 3 + k; o = []
            if slot == self.xpollg: o += [f"buffer_load_dword v24, v{vPoll}, {S(sWS)}, 0 offen sc1"]
            if slot == self.mcheck and not self.mcheckg: o += ["@need v25", f"v_cmp_ne_u32 vcc, s{sTag}, v25", "s_cbranch_vccnz L_spin_m", "L_back_m:"] + self.stamp("mseen") + mnext(2)
            if slot >= self.mcheck: o += mnext(self.mper[k])
            if slot == self.xflag: o += ["@vm xast"] + self.flagstore(7, sXo, True)
            o += bq[:2]; del bq[:2]
            if k == 2:
                rb = (d - 192) // 16; sA, qA = R2("v", 232 + 2 * rb), R2("v", 236 + 2 * rb)
                X = [R2("v", d + 2 * k_) for k_ in range(4)]
                if (d - 192) % 16 == 0:
                    st = [f"v_pk_add_f32 {sA}, {X[0]}, {X[1]}", f"v_pk_mul_f32 {qA}, {X[0]}, {X[0]}", f"v_pk_add_f32 v[240:241], {X[2]}, {X[3]}", f"v_pk_mul_f32 v[242:243], {X[1]}, {X[1]}",
                          f"v_pk_fma_f32 {qA}, {X[2]}, {X[2]}, {qA}", f"v_pk_fma_f32 v[242:243], {X[3]}, {X[3]}, v[242:243]"]
                else:
                    st = [f"v_pk_add_f32 {sA}, {sA}, {X[0]}", f"v_pk_fma_f32 {qA}, {X[0]}, {X[0]}, {qA}", f"v_pk_add_f32 v[240:241], v[240:241], {X[1]}", f"v_pk_fma_f32 v[242:243], {X[1]}, {X[1]}, v[242:243]",
                          f"v_pk_add_f32 {sA}, {sA}, {X[2]}", f"v_pk_fma_f32 {qA}, {X[2]}, {X[2]}, {qA}", f"v_pk_add_f32 v[240:241], v[240:241], {X[3]}", f"v_pk_fma_f32 v[242:243], {X[3]}, {X[3]}, v[242:243]",
                          f"v_pk_add_f32 {sA}, {sA}, v[240:241]", f"v_pk_add_f32 {qA}, {qA}, v[242:243]"]
                o = st + o
            return o
        L += self.gelu([192 + 8 * n for n in range(4)], ex_g, 224, 16) + self.stamp("gelu1")
        M = lambda s, e, qb: f"{MF} {R4('v', 64+(e*4+qb)*4)}, {R4('a', 16*s+4*e)}, {R4('a', Breg(s, qb))}, {R4('v', 64+(e*4+qb)*4) if s else '0'}"
        mf = [M(s, e, qb) for s in range(6) for e in range(4) for qb in range(4)]
        mf += [M(s, 2 * p + hb, qb) for p in range(2) for qb in range(4) for hb in range(2) for s in (6, 7)]
        gaps = [[] for _ in range(128)]
        assert not bq
        gst = [f"buffer_store_dwordx4 {R4('v', 240+4*eb)}, v0, {S(sGP)}, {('0', 's%d' % DM, 's%d' % (DM+2), 's%d' % (DM+1))[eb]} offen sc1 ;#gst" for eb in range(4)]
        L += [f"s_mov_b32 s{DM+k}, {4*PLANE*(k+1)}" for k in range(3)]
        L += [f"s_and_b32 s{t3}, s{sWave}, 1", f"s_lshl_b32 s{t3}, s{t3}, 12", f"s_add_u32 s{t2}, s{t3}, 4096", f"s_xor_b32 s{t3}, s{t3}, 4096"]
        self.G = 0; polled = 0
        for s in range(8):
            g = 16 * s
            if s < 6: gaps[g + 15].append(f"@need a[{16*(s+1)}:{16*(s+1) + (15 if s < 5 else 31)}]")
            for n in range(4 if s < 6 else (self.nst6 if s == 6 else 0)):
                gg = g + 4 * n
                if gg == self.xpoll: gaps[gg + 2].append(f"buffer_load_dword v24, v{vPoll}, {S(sWS)}, 0 offen sc1")
                elif mq:
                    ld, post = mq.pop(0); gaps[gg + 2] += ld; gaps[gg + 3] += post
                elif gg >= self.xcheck and gg < self.rstop:
                    pre, ld, post = self.dma(self.G); self.G += 1
                    gaps[gg + 1] += pre; gaps[gg + 2] += ld; gaps[gg + 3] += post
            gaps[g + 13] += self.stamp(f"g2s{s}")
        gaps[self.xcheck - 3] += ["@need v24", f"v_cmp_ne_u32 vcc, s{sTag}, v24"]
        gaps[self.xcheck - 1] += ["s_cbranch_vccnz L_spin_xa", "L_back_xa:"]
        self.stubs.append(self.spin("xa", vPoll, 24))
        st1 = ["v_add_f32 v232, v232, v233", "v_add_f32 v236, v236, v237", "v_add_f32 v234, v234, v235", "v_add_f32 v238, v238, v239",
               "v_permlane32_swap_b32 v232, v236", "v_permlane32_swap_b32 v234, v238", "v_add_f32 v232, v232, v236", "v_add_f32 v234, v234, v238", "s_nop 0",
               "v_permlane16_swap_b32 v232, v234", "v_add_f32 v232, v232, v234", f"ds_write_b32 v180, v232 offset:{STF}"]
        spread(gaps, st1, list(range(0, 13)))
        gaps[16] += ["@lg0", "s_barrier"]
        gaps[17] += [f"ds_read_b32 v{232+j}, v{180+j} offset:{STF}" for j in (1, 2)]; gaps[19] += [f"ds_read_b32 v235, v183 offset:{STF}"]
        adr = [f"v_add_u32 v{vK}, s{sLds}, v29",
              f"v_lshrrev_b32 v16, 2, v{vLane}", f"v_bfe_u32 v17, v{vLane}, 1, 1", "v_lshlrev_b32 v18, 3, v17", "v_xor_b32 v16, v16, v18",
              "v_lshlrev_b32 v16, 4, v16", "v_lshl_add_u32 v16, v17, 9, v16", f"v_and_b32 v17, 1, v{vLane}", "v_lshl_add_u32 v16, v17, 3, v16",
              f"v_add_u32 v{vV}, s{sLds}, v16", f"v_add_u32 v{vD[0]}, s{t2}, v30", f"v_add_u32 v{vD[1]}, s{t3}, v30"]
        spread(gaps, adr, list(range(19, 29)))
        st2 = ["v_add_f32 v232, v232, v233", "v_add_f32 v234, v234, v235", "v_add_f32 v232, v232, v234", f"v_mul_f32 v232, {f2u(1/256):#x}, v232",
               "v_mov_b32 v233, v232", "s_nop 0", "v_permlane32_swap_b32 v232, v233",
               "v_fma_f32 v233, -v232, v232, v233", "v_max_f32 v233, 0, v233", f"v_add_f32 v233, {f2u(1e-5 * ALPHA**2):#x}, v233", "v_rsq_f32 v233, v233",
               "v_mul_f32 v232, v232, v233", "v_mov_b32 v235, v233", "v_mov_b32 v234, v232", "s_nop 0",
               "v_permlane16_swap_b32 v233, v235", "v_permlane16_swap_b32 v232, v234"]
        st2 += [f"v_fma_f32 v{gacc(eb, rb)+r}, v{gacc(eb, rb)+r}, v{233+2*rb}, -v{232+2*rb}" for rb in range(2) for eb in range(4) for r in range(4)]
        st2 += [f"v_cvt_pk_bf16_f32 v{240+4*eb+r}, v{gacc(eb, 0)+r}, v{gacc(eb, 1)+r}" for eb in range(4) for r in range(4)]
        st2 += [f"v_mov_b32 v{r}, 0" for r in list(range(vC, vC + 14)) + [vC + 15] + list(range(vL, vL + 4))]
        gaps[29].append("@need v[233:235]")
        spread(gaps, st2, list(range(29, 96)))
        left = []
        gaps[99].append("s_nop 1"); gaps[100].append("s_nop 1")
        for k in range(8):
            p, qb = k >> 2, k & 3; t = 32 + 4 * k; g = 96 + 4 * k + 5
            cv2 = lambda e, t_: [f"v_cvt_pk_bf16_f32 v{t_}, v{64+(e*4+qb)*4}, v{65+(e*4+qb)*4}", f"v_cvt_pk_bf16_f32 v{t_+1}, v{66+(e*4+qb)*4}, v{67+(e*4+qb)*4}"]
            for gg, ins in ((g, cv2(2 * p, t)), (g + 2, cv2(2 * p + 1, t + 2)), (g + 3, [f"ds_write_b128 v{vR[0]}, {R4('v', t)} offset:{32768 + (qb*2+p)*1024}"])):
                if gg < 128: gaps[gg] += ins
                else: left += ins
        self.gst = gst
        L += weave(mf, gaps) + ["s_nop 2"] + left + [f"v_mov_b32 v{vC+14}, 0", "v_mov_b32 v0, v167"]
        L += self.stamp("g2")
        G = self.G
        print("   ring pieces before g2", G)
        D = self.D
        for n in range(2):
            pre, ld, post = self.dma(G); G += 1
            L += pre + (["s_nop 0"] if pre else []) + ld + post
        L += self.stamp("qpw") + ["@vm p3"] + self.stamp("p3") + [x for n in range(4) for x in self.kread(0, n, n)]
        L += ["@lg0", "s_barrier"] + self.stamp("b3")
        def qread(s): return [f"ds_read_b128 {R4('a', 32*qb+4*s)}, v{vR[s>>1]} offset:{32768 + (qb*2+(s&1))*1024}" for qb in range(4)]
        L += qread(0) + qread(1)
        for n in range(2):
            pre, ld, post = self.dma(G); G += 1
            L += pre + (["s_nop 0"] if pre else []) + ld + post
        mf = []; gaps = [[] for _ in range(64)]
        for n in range(16): mf += self.qk(n, n % NF, 0)
        mf = self.reorder(mf, self.order & 1)
        for st in range(16):
            g = 4 * st; i = st + D
            t, n = (0, i) if i < 16 else (1, i - 16)
            if n % 2 == 0: gaps[g].append(f"@vm p{t*16+n+1}")
            gaps[g] += self.kread(t, n, i % NF)
            if st % 2 == 0 and st // 2 + 2 < 8:
                qq = qread(st // 2 + 2); gaps[g + 1] += qq[:2]; gaps[g + 5] += qq[2:]
            if G < 32:
                pre, ld, post = self.dma(G); G += 1
                gaps[g + 1] += pre; gaps[g + 2] += ld; gaps[g + 3] += post
            if st % 2 == 1:
                nx = st + 1
                need = f"@need v[{vF+4*(nx%NF)}:{vF+4*(nx%NF)+7}]"
                if nx < 16: need += "".join(f" {R4('a', 32*qb+4*(nx//2))}" for qb in range(4))
                gaps[g + 3].append(need)
        gaps[62].append("s_barrier")
        L += weave(mf, gaps)
        print('   ring pieces issued before loop', G)
        assert G >= 24
        self.G = G; self.nhead = 0
        return L

    def wload(self, c, reg, n, va=0):
        ld = [f"buffer_load_dwordx4 {R4(c, reg)}, v{va}, {S(sWS)}, s{sWoff} offen offset:{(n&3)*1024} sc1"]
        post = [f"s_add_u32 s{sWoff}, s{sWoff}, {4096 if n & 31 != 31 else 4096 + 0x20000 - 0x8000}"] if n & 3 == 3 else []
        return ld, post

    def gelu(self, regs, extra, ty, vc, va=None):
        o = []
        for d in regs:
            X = [R2("v", d + 2 * k) for k in range(4)]; Y = [R2("v", ty + 2 * k) for k in range(4)]
            o += [f"v_pk_mul_f32 {y}, {x}, {x}" for x, y in zip(X, Y)]
            o += [f"v_pk_fma_f32 {y}, {y}, {R2('v', vc)}, {R2('v', vc)} op_sel:[0,1,0] op_sel_hi:[1,1,0]" for y in Y]
            o += [f"v_pk_mul_f32 {y}, {y}, {x}" for x, y in zip(X, Y)]
            o += extra(0, d) + [f"v_exp_f32 v{ty+k}, v{ty+k}" for k in range(8)]
            if va is None: o += [f"v_pk_add_f32 {y}, {y}, 1.0 op_sel_hi:[1,0]" for y in Y]
            else: o += [f"v_pk_fma_f32 {y}, {y}, {R2('v', va)}, {R2('v', va)} op_sel_hi:[1,0,0]" for y in Y]
            o += extra(1, d) + [f"v_rcp_f32 v{ty+k}, v{ty+k}" for k in range(8)]
            o += [f"v_pk_mul_f32 {x}, {x}, {y}" for x, y in zip(X, Y)] + extra(2, d)
        return o

    def flagstore(self, vdata, soff, plain=False):
        if plain: return ["s_mov_b64 exec, 1", f"buffer_store_dword v{vdata}, off, {S(sWS)}, s{soff} sc1", "s_mov_b64 exec, -1"]
        return [f"s_mov_b64 exec, 1 ;!\nbuffer_store_dword v{vdata}, off, {S(sWS)}, s{soff} sc1\ns_mov_b64 exec, -1"]

    def spin(self, name, vaddr, vdst):
        return [f"L_spin_{name}:", f"s_mov_b32 s{sCnt}, 0", f"L_spinl_{name}:", "s_sleep 1",
                f"buffer_load_dword v{vdst}, v{vaddr}, {S(sWS)}, 0 offen sc1", f"s_add_u32 s{sCnt}, s{sCnt}, 1",
                f"s_cmp_gt_u32 s{sCnt}, 0x10000", "s_waitcnt vmcnt(0)", f"s_cbranch_scc1 L_back_{name}",
                f"v_cmp_ne_u32 vcc, s{sTag}, v{vdst}", f"s_cbranch_vccnz L_spinl_{name}", f"s_branch L_back_{name}"]

    def F(self, f): return R4("v", vF + 4 * f)
    def kread(self, t, n, f):
        s, kb = n >> 1, n & 1
        return [f"ds_read_b128 {self.F(f)}, v{vK} offset:{((t*16 + 2*s) % 40)*1024 + kb*256}"]
    def vread(self, t, n, f):
        return [f"ds_read_b64_tr_b16 {R2('v', vF+4*f+2*j)}, v{vV} offset:{((t*16+n) % 40)*1024 + j*256}" for j in range(2)]
    def qk(self, n, f, buf, czero=False):
        s, kb = n >> 1, n & 1; o = []
        for q in range(4):
            d = vS[buf] + 8 * q + 4 * kb
            C = R4("v", d) if s else ("0" if czero else R4("v", vC + 4 * q))
            o.append(f"{MF} {R4('v', d)}, {self.F(f)}, {R4('a', 32*q+4*s)}, {C}")
        return o
    def pv(self, n, f, buf, zero):
        o = []
        for q in range(4):
            oc, d = Oreg(q, n)
            o.append(f"{MF} {R4(oc, d)}, {self.F(f)}, {R4('v', vS[buf]+8*q)}, {'0' if zero else R4(oc, d)}")
        return o
    def reorder(self, mf, on):
        if not on: return mf
        out = []
        for i in range(0, len(mf), 8):
            for n in range(4): out += [mf[i + n], mf[i + 4 + n]]
        return out
    def softmax(self, buf):
        seq = []; pend = []
        for q in range(4):
            b = vS[buf] + 8 * q; ts = vTS + q
            for r in range(8):
                seq.append(f"v_exp_f32 v{b+r}, v{b+r}")
                seq += pend; pend = []
                if r == 1: pend.append(f"v_add_f32 v{ts}, v{b}, v{b+1}")
                if r > 1: pend.append(f"v_add_f32 v{ts}, v{ts}, v{b+r}")
                if r % 2 == 1: pend.append(f"v_cvt_pk_bf16_f32 v{b+r//2}, v{b+r-1}, v{b+r}")
        seq.append(f"v_max3_f32 v{vT0}, v{vTS}, v{vTS+1}, v{vTS+2}")
        seq += pend
        seq += [f"v_add_f32 v{vT0}, v{vT0}, v{vTS+3}", f"v_cmp_nge_f32 vcc, s{sThi}, v{vT0}"]
        return seq
    NHEAD = 28
    def iteration(self, j, last, name):
        D = self.D; p = j & 1
        gaps = [[] for _ in range(128)]; self.after = []
        a = []; b = []
        for i in range(16): a += self.qk(i, i % NF, 1 - p); b += self.pv(i, i % NF, p, j == 0)
        mf = ([None] * 64 if last else self.reorder(a, self.order & 1)) + self.reorder(b, self.order & 2)
        G = self.G
        for st in range(32):
            i = st + D; g = 4 * st
            if i < 16: t, n, isk = j + 1, i, True
            elif i < 32: t, n, isk = j, i - 16, False
            else: t, n, isk = j + 2, i - 32, True
            if isk:
                if not last and t < 16:
                    if n % 2 == 0 and (n == 0 or n >= 8 or j == 0): gaps[max(g - 1, 0)].append(f"@vm p{t*16 + (7 if n == 0 else n + 1)}")
                    gaps[g] += self.kread(t, n, i % NF)
            else: gaps[g] += self.vread(t, n, i % NF)
            if j == 0 and st in self.gsteps: gaps[g + (2 if st < 16 else 3)].append(self.gst.pop(0))
            if (st >= 16 or (j == 0 and G < 40)) and not last:
                pre, ld, post = self.dma(G); G += 1
                gaps[g + 1] += pre; gaps[g + 2] += ld; gaps[g + 3] += post
            if st % 2 == 1 and (st >= 15 or not last) and not (last and st == 31):
                nx = (st + 1) % NF
                gaps[g + 3].append(f"@need v[{vF+4*nx}:{vF+4*nx+7}]")
        self.G = G
        assert not self.gst
        gaps[63].append(f"s_cbranch_vccnz L_stub_{name}")
        if j == 0:
            gaps[63] += [f"L_mid_{name}:"]
        ladd = [f"v_add_f32 v{vL+q}, v{vL+q}, v{vTS+q}" for q in range(4)]
        gaps[65] += ladd[:2]; gaps[67] += ladd[2:]
        self.stubs.append([f"L_stub_{name}:", f"s_mov_b32 s{sP0}, {((j*16) % 40)*1024}", f"s_mov_b32 s{sP1}, {((j*16+8) % 40)*1024}",
                           f"s_mov_b32 s{sFirst}, {int(j == 0)}", f"s_call_b64 s[{sRet}:{sRet+1}], L_rare{p}", f"s_branch L_back_{name}"])
        def place(ex, g0):
            k = 0
            for x in ex:
                gaps[g0 + 2 * k].append(x)
                if not x.startswith("s_"): k += 1
        gaps[3] += self.stamp(f"it{j}")
        if j == 2:
            gaps[1].append(f"v_mov_b32 v0, s{sTag}")
            gaps[6] += ["@vm gst"] + self.flagstore(0, sGf)
        if j == 11:
            place([f"s_and_b32 s{t0}, s{sGf}, 0xffffff80", f"v_and_b32 v{vPoll}, 3, v{vLane}", f"s_lshl_b32 s{t1}, s{sWave}, 7", f"v_lshl_add_u32 v{vPoll}, v{vPoll}, 2, s{t0}",
                   f"s_add_u32 s{t1}, s{t1}, {FLAG_FOLD}", f"v_lshrrev_b32 v0, 5, v{vLane}", f"s_sub_u32 s{t1}, s{t1}, s{t0}", f"v_mad_u32_u24 v{vPoll}, v0, s{t1}, v{vPoll}",
                   f"s_cmp_eq_u32 s{sTown}, 0", f"s_cselect_b32 s{t0}, 0, 128", f"v_nop", f"s_sub_u32 s{t0}, s{sGf}, s{t0}", f"v_writelane_b32 v{vPoll}, s{t0}, 4",
                   f"s_cmp_ge_u32 s{sTown}, 124", f"s_cselect_b32 s{t0}, 0, 128", f"v_nop", f"s_add_u32 s{t0}, s{sGf}, s{t0}", f"v_writelane_b32 v{vPoll}, s{t0}, 5"], 69)
        if j == 12:
            gaps[2].append(f"buffer_load_dword v0, v{vPoll}, {S(sWS)}, 0 offen sc1")
            gaps[69] += ["@need v0", f"v_cmp_ne_u32 vcc, s{sTag}, v0"]
            gaps[73] += ["s_cbranch_vccnz L_spin_tl", "L_back_tl:"]
            self.stubs.append(self.spin("tl", vPoll, 0))
            place([f"v_bfe_u32 v0, v{vLane}, 2, 1", f"s_lshl_b32 s{t0}, s{sTown}, 14", f"v_mul_u32_u24 v0, 192, v0", f"s_lshl_b32 s{t1}, s{sWave}, 12", f"v_add_u32 v0, v0, v{vK}",
                   f"s_add_u32 s{t0}, s{t0}, s{t1}", f"v_lshlrev_b32 v{vPoll}, 4, v{vLane}", f"s_sub_u32 s{t0}, s{t0}, s{sLds}", f"v_add_u32 v0, s{t0}, v0",
                   f"s_add_u32 s{t1}, s{t1}, {DW_F}", "v_nop"], 77)
        if j == 13:
            for n in range(4):
                rb, ss = n >> 1, n & 1; g = 4 * (24 + n); off = ss * 2048 + rb * 64
                gaps[g + 1].append(f"s_add_u32 m0, s{sLds}, {16384 + n*1024 - off}")
                gaps[g + 2].append(f"buffer_load_dwordx4 v0, {S(sXA)}, 0 offen offset:{off} sc1 lds ;#x48")
            gaps[113].append(f"s_add_u32 m0, s{sLds}, 20480")
            for n in range(4): gaps[4 * (28 + n) + 2].append(f"buffer_load_dwordx4 v{vPoll}, {S(sWS)}, s{t1} offen offset:{n*1024} sc1 lds ;#x48")
            place([f"s_lshr_b32 s{t0}, s3, 3", f"s_lshl_b32 s{t0}, s{t0}, 2", f"v_lshlrev_b32 v{vD[0]}, 7, v{vLane}", f"s_add_u32 s{t0}, s{t0}, s{sWave}", f"s_and_b32 s{t0}, s{t0}, 63", "v_nop",
                   f"s_mul_i32 s{t0}, s{t0}, 6144", f"s_add_u32 s{t0}, s{t0}, {WU_F}", f"v_min_u32 v{vD[0]}, {47*128}, v{vD[0]}"], 97)
            gaps[107] += [f"buffer_load_dword v{vD[1]}, v{vD[0]}, {S(sWS)}, s{t0} offen ;#x48"]
        if j == 14:
            place([f"s_lshl_b32 s{t0}, s{sTown}, 4", f"s_sub_u32 s{t0}, s{t0}, 4", f"v_mov_b32 v0, v{vPoll}", f"s_lshl_b32 s{sWoff}, s{sWave}, 15", f"v_lshrrev_b32 v{vD[0]}, 5, v{vLane}",
                   f"s_add_u32 s{sWoff}, s{sWoff}, {WU_F}", f"v_mul_u32_u24 v{vPoll}, 40, v{vD[0]}", f"v_sub_u32 v{vPoll}, v{vLane}, v{vPoll}", f"v_add_u32 v{vPoll}, s{t0}, v{vPoll}",
                   f"s_movk_i32 s{t0}, 2000", f"v_cmp_gt_u32 s[{t2}:{t3}], s{t0}, v{vPoll}", f"v_mul_u32_u24 v{vD[0]}, {8*PLANE}, v{vD[0]}", f"v_lshl_add_u32 v{vPoll}, v{vPoll}, 4, v{vD[0]}",
                   f"s_and_b32 s{t2}, s{t2}, 0xffffff", f"s_and_b32 s{t3}, s{t3}, 0xffffff00", f"v_mov_b32 v{vD[0]}, 0x40000000", f"s_mul_i32 s{t1}, s{sWave}, {16*PLANE}",
                   f"v_cndmask_b32 v{vPoll}, v{vD[0]}, v{vPoll}, s[{t2}:{t3}]"], 1)
            for n in range(8):
                g = 64 + 8 * n + 4
                gaps[g + 1].append(f"s_add_u32 m0, s{sLds}, {GB + n*1040}")
                gaps[g + 2].append(f"buffer_load_dwordx4 v{vPoll}, {S(sGP)}, s{t1} offen sc1 lds ;#gw")
                gaps[g + 3].append(f"s_add_u32 s{t1}, s{t1}, {PLANE}")
            place([f"s_lshl_b32 s{t0}, s{sTown}, 14", f"s_lshl_b32 s{t2}, s{sWave}, 7", f"v_lshrrev_b32 v{vD[0]}, 3, v{vLane}", f"s_add_u32 s{t0}, s{t0}, s{t2}", f"v_mul_u32_u24 v{vD[0]}, 384, v{vD[0]}",
                   f"v_add_u32 v{vD[0]}, v{vD[0]}, v0"], 29)
            for n, st in enumerate((26, 28, 30, 30)):
                g = 4 * st + (0 if n < 3 else 2)
                gaps[g + (1 if n < 3 else 1)].append(f"s_add_u32 m0, s{sLds}, {self.XR + n*1024}")
                gaps[g + 2].append(f"buffer_load_dwordx4 v{vD[0]}, {S(sX)}, s{t0} offen lds ;#gw")
                if n < 3: gaps[g + 3].append(f"s_add_u32 s{t0}, s{t0}, 4096")
        if last:
            e1, e2, e3, e4 = self.pretail()
            for n in range(16):
                ld, post = self.wload("a", 4 * n, n)
                if j == 15: gaps[64 + 4 * n + 2] += ld; gaps[64 + 4 * n + 3] += post
                else: self.after += ld + post
            if j == 15:
                spread(gaps, e1, list(range(69, 92)))
                spread(gaps, e2, list(range(92, 104)))
                gaps[99] += ["@vm gw", "@lgw", "s_barrier"]
                spread(gaps, e3, list(range(104, 116)))
                spread(gaps, e4, list(range(116, 127)))
                gaps[120].append("@lg0")
            else:
                self.after += e1 + e2 + ["@vm gw", "@lg0", "s_barrier"] + e3 + ["@lg0"] + e4
        sm = self.softmax(p)
        cur = sm[self.nhead:]
        left = spread(gaps, cur, list(range(5 if j == 0 else 0, 61)), force=(j == 0))
        if left: gaps[62] += left
        if not last:
            nx = self.softmax(1 - p)
            if j == 14:
                left = spread(gaps, nx[:-1], list(range(69, 128)), force=True)
                self.nhead = len(nx) - 1 - len(left)
            else:
                left = spread(gaps, nx[:self.NHEAD], list(range(69, 128)), force=True); self.nhead = self.NHEAD - len(left)
        out = weave(mf, gaps)
        if j == 0:
            k = out.index(f"L_mid_{name}:")
            out[k:k + 1] = [f"v_min3_f32 v{vT0}, v{vTS}, v{vTS+1}, v{vTS+2}", f"v_min_f32 v{vT0}, v{vT0}, v{vTS+3}",
                            f"v_cmp_nle_f32 vcc, s{sTlo}, v{vT0}", f"s_cbranch_vccnz L_stub_{name}", f"L_back_{name}:"]
        else:
            k = out.index(f"s_cbranch_vccnz L_stub_{name}")
            out.insert(k + 1, f"L_back_{name}:")
        return out + self.after

    def scaleO(self, q, f):
        L = []
        oc, d = Oreg(q, 0)
        if oc == "v":
            for r in range(64): L.append(f"v_mul_f32 v{d+r}, v{f}, v{d+r}")
        else:
            for r in range(0, 64, 4):
                L += [f"v_accvgpr_read_b32 v{48+k}, a{d+r+k}" for k in range(4)]
                L += [f"v_mul_f32 v{48+k}, v{f}, v{48+k}" for k in range(4)]
                L += [f"v_accvgpr_write_b32 a{d+r+k}, v{48+k}" for k in range(4)]
        return L
    def rare(self, p):
        L = [f"L_rare{p}:", "s_waitcnt lgkmcnt(0)", "s_nop 7", "s_nop 7"]
        b = vS[p]; o = vS[1 - p]
        for h in range(2):
            L.append(f"v_add_u32 v{vT0}, s{sP0 + h}, v{vK}")
            for grp in range(2):
                for k in range(4):
                    n = 4 * grp + k
                    L.append(f"ds_read_b128 {self.F(4+k)}, v{vT0} offset:{(n>>1)*2048 + (n&1)*256}")
                L.append("s_waitcnt lgkmcnt(0)")
                for k in range(4): L += self.qk(8 * h + 4 * grp + k, 4 + k, p, czero=True)
        L += ["s_nop 7", "s_nop 7"]
        for q in range(4):
            s = b + 8 * q; m = vTS + q
            L += [f"v_max3_f32 v{m}, v{s}, v{s+1}, v{s+2}", f"v_max3_f32 v{m}, v{m}, v{s+3}, v{s+4}", f"v_max3_f32 v{m}, v{m}, v{s+5}, v{s+6}", f"v_max_f32 v{m}, v{m}, v{s+7}",
                  f"v_mov_b32 v{vT0}, v{m}", "s_nop 1", f"v_permlane32_swap_b32 v{vT0}, v{m}", "s_nop 1", f"v_max_f32 v{m}, v{m}, v{vT0}",
                  f"v_mov_b32 v{vT0}, v{m}", "s_nop 1", f"v_permlane16_swap_b32 v{vT0}, v{m}", "s_nop 1", f"v_max_f32 v{m}, v{m}, v{vT0}",
                  f"v_sub_f32 v{m}, 0, v{m}"]
        L += [f"s_cmp_lg_u32 s{sFirst}, 0", f"s_cbranch_scc1 L_rare{p}_a"]
        for q in range(4): L.append(f"v_min_f32 v{vTS+q}, v{vTS+q}, v{vC+4*q}")
        for q in range(4):
            L += [f"v_sub_f32 v{vT0}, v{vTS+q}, v{vC+4*q}", f"v_exp_f32 v{vT0}, v{vT0}", "s_nop 0", f"v_mul_f32 v{vL+q}, v{vT0}, v{vL+q}"] + self.scaleO(q, vT0)
        L.append(f"L_rare{p}_a:")
        for q in range(4):
            L.append(f"v_sub_f32 v{vT0}, v{vTS+q}, v{vC+4*q}")
            for r in range(8): L += [f"v_add_f32 v{o+8*q+r}, v{o+8*q+r}, v{vT0}", f"v_add_f32 v{b+8*q+r}, v{b+8*q+r}, v{vTS+q}"]
            for r in range(4): L.append(f"v_mov_b32 v{vC+4*q+r}, v{vTS+q}")
        L += self.softmax(p)[:-1] + ["s_nop 1", f"s_setpc_b64 s[{sRet}:{sRet+1}]"]
        return L

    R1, X32, LM, ZB, OB, TB, XR = 0, 16384, 39936, 12288, 20480, 20480, 33792
    vR = [22, 23, 24, 25]; vSel = 16
    def aread(self, n):
        s, rb = n >> 1, n & 1
        return f"ds_read_b128 {R4('v', 64+4*(n%4))}, v{self.vR[s>>1]} offset:{self.X32 + (rb*2 + (s&1))*1024}"
    def pretail(self):
        vR, vSel, LM = self.vR, self.vSel, self.LM
        e1 = [f"v_permlane32_swap_b32 v{vC}, v{vC+8}", f"v_permlane32_swap_b32 v{vC+4}, v{vC+12}", "v_permlane32_swap_b32 v8, v10", "v_permlane32_swap_b32 v9, v11",
              "v_add_f32 v8, v8, v10", "v_add_f32 v10, v9, v11", f"v_permlane16_swap_b32 v{vC}, v{vC+4}", f"v_lshl_add_u32 v28, v{vLane}, 3, s{sLds}", "s_nop 0",
              "v_permlane16_swap_b32 v8, v10", f"v_mov_b32 v9, v{vC}", "v_add_f32 v8, v8, v10", f"ds_write_b64 v28, v[8:9] offset:{LM}"]
        e2 = [f"s_xor_b32 s{t0}, s{sWave}, 1", f"s_mul_i32 s{t0}, s{t0}, {REG}", f"v_add_u32 v{vR[0]}, s{sLds}, v0", f"v_and_b32 v26, 15, v{vLane}",
              f"s_xor_b32 s{t1}, s{sWave}, 2", f"s_mul_i32 s{t1}, s{t1}, {REG}", f"v_add_u32 v{vR[1]}, s{t0}, v0", f"v_lshl_add_u32 v29, v{vLane}, 3, s{t0}",
              f"s_xor_b32 s{t2}, s{sWave}, 3", f"s_mul_i32 s{t2}, s{t2}, {REG}", f"v_add_u32 v{vR[2]}, s{t1}, v0", f"v_lshl_add_u32 v30, v{vLane}, 3, s{t1}",
              f"v_add_u32 v{vR[3]}, s{t2}, v0", f"v_lshl_add_u32 v31, v{vLane}, 3, s{t2}", f"v_lshrrev_b32 v27, 4, v{vLane}", f"v_lshl_add_u32 v6, v26, 4, s{sLds}"]
        e3 = [f"ds_read_b64 {R2('v', 8+2*j)}, v{28+j} offset:{LM}" for j in (1, 2, 3)] + [self.aread(n) for n in range(3)]
        e3 += ["v_lshlrev_b32 v27, 2, v27", "v_sub_u32 v26, v26, v27", "v_and_b32 v27, 1, v26", "v_lshlrev_b32 v27, 4, v27", "v_mov_b32 v7, 0x3f80", "v_lshlrev_b32 v27, v27, v7"]
        e4 = ["v_lshrrev_b32 v26, 1, v26", f"v_mov_b32 v{vSel}, 0", "v_cmp_eq_u32 vcc, 0, v26", f"v_mov_b32 v{vSel+1}, 0", f"v_mov_b32 v{vSel+4}, 0",
              f"v_cndmask_b32 v{vSel+2}, v{vSel}, v27, vcc", "v_cmp_eq_u32 vcc, 1, v26", f"v_mov_b32 v{vSel+5}, 0", "v_xor_b32 v2, v9, v11",
              f"v_cndmask_b32 v{vSel+3}, v{vSel}, v27, vcc", "v_xor_b32 v4, v9, v13", "v_xor_b32 v5, v9, v15", "v_or3_b32 v2, v2, v4, v5", "v_cmp_ne_u32 vcc, 0, v2"]
        return e1, e2, e3, e4
    def tail(self):
        L = []
        R1, X32, LM, ZB, OB, TB, vR, vSel = self.R1, self.X32, self.LM, self.ZB, self.OB, self.TB, self.vR, self.vSel
        XR = self.XR
        def wvreg(n): return ("v", 144 + 4 * n) if n < 12 else (("v", 208 + 4 * (n - 12)) if n < 24 else ("a", 4 * (n - 24)))
        wq = [self.wload("a", 4 * n, n) for n in range(16, 32)] + [self.wload("a", 4 * n, n) for n in range(32)]
        wv = [self.wload(*wvreg(n), n) for n in range(32)]
        Alo, Ahi = R4("v", vSel + 2), R4("v", vSel)
        units = [(j, qb, kp) for j in (1, 2, 3) for qb in range(2) for kp in range(2)]
        roff = lambda j, qb, kp: R1 + ((j - 1) * 4 + qb * 2 + kp) * 1024
        uacc = lambda eb, rb: 96 + (eb * 2 + rb) * 4
        def ugemm(n0):
            mf = []; gaps = [[] for _ in range(32)]
            for n in range(n0, n0 + 8):
                s, rb = n >> 1, n & 1; g = 4 * (n - n0)
                for eb in range(4):
                    d = uacc(eb, rb)
                    mf.append(f"{MF} {R4('v', d)}, {R4('v', 64+4*(n%4))}, {R4('a', (s*4+eb)*4)}, {R4('v', d) if s else '0'}")
                if n + 3 < 16: gaps[g].append(self.aread(n + 3))
                if n + 1 < n0 + 8: gaps[g + 3].append(f"@need {R4('v', 64+4*((n+1)%4))} a[{((n+1)>>1)*16}:{((n+1)>>1)*16+15}]")
            return mf, gaps
        def redmf(c, bc, bufs):
            rd = []; mf = []
            for k, (j, qb, kp) in enumerate(units):
                t = R4(bc, bufs[k]); o = 128 + 64 * qb + 8 * kp
                rd.append(f"ds_read_b128 {t}, v{vR[j]} offset:{roff(j, qb, kp)}")
                mf += [f"{MF} {R4(c, o)}, {Alo}, {t}, {R4(c, o)}", f"{MF} {R4(c, o+4)}, {Ahi}, {t}, {R4(c, o+4)}"]
            return rd, mf
        L += self.stamp("loopend") + ["s_cbranch_vccnz L_slowA", "L_back_slowA:"]
        mf, gaps = ugemm(0)
        k = 0
        for n, (j, qb, kp) in enumerate(units):
            o = 128 + 64 * qb + 16 * j + 8 * kp; g = (n * 8) // 3
            cv = [f"v_cvt_pk_bf16_f32 v{o+r}, v{o+2*r}, v{o+2*r+1}" for r in range(4)]
            gaps[g] += cv[:2]; gaps[g + 1] += cv[2:]; gaps[g + 2] += [f"ds_write_b128 v{vR[0]}, {R4('v', o)} offset:{roff(j, qb, kp)}"]
            if n < 11:
                ld, post = wq.pop(0); gaps[g + 2] += ld; gaps[g + 3] += post
        L += weave(mf, gaps)
        L += ["v_add_f32 v8, v8, v10", "v_add_f32 v12, v12, v14", f"s_lshl_b32 s{t1}, s2, 2", f"s_add_u32 s{t1}, s{t1}, s{sWave}", f"s_lshl_b32 s{sXo}, s{t1}, 13", f"s_add_u32 s{sXo}, s{sXo}, {XCH}",
              f"s_lshl_b32 s{t3}, s{t1}, 7", f"s_add_u32 s{t3}, s{t3}, {FLAG_XCH}", f"s_add_u32 s{t0}, s{sXo}, 4096", "v_add_f32 v8, v8, v12", f"v_lshlrev_b32 v29, 3, v{vLane}"]
        L += ["@lg0", "s_barrier"] + self.stamp("B1")
        rd, mf = redmf("v", "v", [32 + 4 * k for k in range(8)] + [80 + 4 * k for k in range(4)])
        L += rd
        c0 = -2 * 0.7978845608028654 * LOG2E / ALPHA; c1 = c0 * 0.044715 / ALPHA ** 2
        L += [f"v_and_b32 v4, 15, v{vLane}", f"v_lshrrev_b32 v5, 4, v{vLane}",
              f"s_lshl_b32 s{t1}, s{sTown}, 14", f"s_lshl_b32 s{t2}, s{sWave}, 7", f"s_add_u32 s{t1}, s{t1}, s{t2}",
              "v_lshlrev_b32 v13, 11, v5", "v_lshl_add_u32 v13, v4, 3, v13", f"v_add_u32 v13, s{t1}, v13", "v_add_u32 v14, 8192, v13",
              "v_lshlrev_b32 v28, 9, v5", "v_lshl_add_u32 v28, v4, 3, v28", f"v_add_u32 v28, s{sLds}, v28"]
        gaps = [[] for _ in range(24)]
        for n in range(5):
            ld, post = wq.pop(0); gaps[4 * n + 1] += ld; gaps[4 * n + 2] += post
        adr = [f"v_mov_b32 v2, {f2u(c0):#x}", f"v_mov_b32 v3, {f2u(c1):#x}", "v_mov_b32 v10, v8", "v_mov_b32 v11, v9",
               "v_and_b32 v15, 1, v5", "v_lshrrev_b32 v12, 1, v5", "v_lshl_add_u32 v15, v15, 1, v12",
               "v_lshrrev_b32 v27, 3, v4", "v_mul_u32_u24 v12, 12, v27", "v_xor_b32 v12, v12, v4", "v_mul_u32_u24 v12, 1040, v12",
               "v_mul_u32_u24 v27, 640, v27", "v_lshl_add_u32 v12, v15, 6, v12", f"v_add3_u32 v12, v12, v27, s{sLds}",
               "v_lshrrev_b32 v26, 1, v15", "v_lshrrev_b32 v27, 3, v4", "v_lshl_add_u32 v26, v26, 1, v27", "v_lshlrev_b32 v26, 10, v26",
               "v_bfe_u32 v27, v4, 1, 1", "v_lshl_add_u32 v26, v27, 9, v26", "v_bfe_u32 v27, v4, 2, 1", "v_lshl_add_u32 v26, v27, 8, v26",
               "v_and_b32 v27, 1, v15", "v_lshl_add_u32 v26, v27, 7, v26", "v_and_b32 v27, 1, v4", "v_lshl_add_u32 v26, v27, 3, v26",
               "v_bfe_u32 v27, v26, 8, 2", "v_lshl_add_u32 v26, v27, 5, v26", "v_bfe_u32 v27, v26, 10, 1", "v_lshl_add_u32 v26, v27, 4, v26", f"v_add_u32 v15, s{sLds}, v26",
               f"v_and_b32 v27, 31, v{vLane}", "v_lshlrev_b32 v27, 3, v27", f"v_mov_b32 v4, {f2u(ALPHA):#x}", "v_lshlrev_b32 v5, 5, v5", f"v_mov_b32 v7, s{sTag}"]
        gaps[21].append(f"buffer_store_dwordx2 v[8:9], v29, {S(sWS)}, s{t0} offen sc1")
        left = spread(gaps, adr, list(range(0, 24)), force=True)
        L += weave(mf, gaps) + left
        mf, gaps = ugemm(8)
        for n in range(4):
            o = 128 + 64 * (n >> 1) + 8 * (n & 1); g = 1 + 4 * n
            cv = [f"v_cvt_pk_bf16_f32 v{o+r}, v{o+2*r}, v{o+2*r+1}" for r in range(4)]
            gaps[g] += cv[:2]; gaps[g + 1] += cv[2:]
            gaps[g + 2].append(f"buffer_store_dwordx4 {R4('v', o)}, v0, {S(sWS)}, s{sXo} offen offset:{n*1024} sc1 ;#xch")
        gaps[16] += self.stamp("pub")
        tapr = lambda u: 144 + 4 * u if u < 12 else 208 + 4 * (u - 12)
        for n in range(4):
            ld, post = wq.pop(0); gaps[18 + 4 * n] += ld; gaps[19 + 4 * n] += post
        left = spread(gaps, [f"ds_read_b128 {R4('v', tapr(u))}, v6 offset:{TB + u*256}" for u in range(16)] + ["v_permlane32_swap_b32 v10, v8", "v_permlane32_swap_b32 v11, v9"], list(range(17, 32)))
        L += ["@need v[64:67] a[64:79]"] + weave(mf, gaps) + self.stamp("ug")
        L += [f"ds_read_b128 {R4('v', 32+4*p)}, v12 offset:{GB + p*16}" for p in range(8)]
        exq = [a + b for a, b in wq]
        late = exq[len(exq) - self.nwdlate:]; exq = exq[:len(exq) - self.nwdlate]
        def ex_u(k, d):
            o = exq.pop(0)
            if k == 0 and d == 104: o += [f"ds_read_b64 {R2('v', 128+2*(rb*4+r))}, v28 offset:{XR + rb*2048 + r*128}" for rb in range(2) for r in range(4)]
            if k == 0 and d == 96: o += [f"ds_read_b128 {R4('v', 32+4*p)}, v12 offset:{GB + p*16}" for p in range(8, 12)]
            return o
        L += self.gelu([96 + 8 * n for n in range(4)], ex_u, 80, 2, 4)
        L += ["@vm xch"] + self.flagstore(7, t3, True) + [f"s_xor_b32 s{t3}, s{t3}, 512", f"s_xor_b32 s{sXo}, s{sXo}, 32768", f"s_add_u32 s{t2}, s{sXo}, 4096", f"v_mov_b32 v6, s{t3}"]
        L += self.stamp("gelu")
        for p in range(12):
            for _ in range(2 if 4 <= p <= 7 else 1):
                if exq and 2 <= p <= 9: L += exq.pop(0)
            for o in range(7, -1, -1):
                k = p - (o + 1) // 2
                if 0 <= k < 8:
                    for ch in range(4):
                        a_, x_, w_ = 224 + 4 * o + ch, 32 + 4 * p + ch, tapr(8 * (o & 1) + k) + ch
                        L.append(f"v_dot2c_f32_bf16 v{a_}, v{x_}, v{w_}" if k else f"v_dot2_f32_bf16 v{a_}, v{x_}, v{w_}, 0")
        L += self.stamp("conv")
        print('   exq after conv', len(exq))
        wv = [(x[:1], x[1:]) for x in late] + wv
        for o in range(0, 8, 2):
            L += [f"v_mul_f32 v{224+4*(o+e)+ch}, v{224+4*(o+e)+ch}, v{96+8*ch+o+e}" for e in range(2) for ch in range(4)]
            L += [f"v_cvt_pk_bf16_f32 v{224+4*o+h}, v{224+4*o+2*h}, v{225+4*o+2*h}" for h in range(4)]
            L += [f"v_xor_b32 v{10+e}, {(o+e)*16}, v15" for e in range(2)]
            L += [f"ds_write_b64 v{10+e}, {R2('v', 224+4*o+2*e)} offset:{ZB}" for e in range(2)]
            if exq: L += exq.pop(0)
        L += [f"v_xor_b32 v{80+2*j}, v5, v{vR[j]}" for j in range(4)] + [f"v_xor_b32 v{81+2*j}, 16, v{80+2*j}" for j in range(4)]
        while exq: L += exq.pop(0)
        L += ["@lg0", "s_barrier"] + self.stamp("Bz")
        facc = lambda eb, rb: 32 + (rb * 4 + eb) * 4
        zread = lambda n: f"ds_read_b128 {R4('v', 64+4*(n%4))}, v{80+(n>>1)} offset:{ZB + ((n&1)*2 + ((n>>1)&1))*1024}"
        L += [zread(n) for n in range(3)] + [f"buffer_load_dword v7, v6, {S(sWS)}, 0 offen sc1"]
        for rb in range(2):
            for r in range(4):
                x = 128 + 2 * (rb * 4 + r)
                L += [f"v_lshlrev_b32 v{facc(0, rb)+r}, 16, v{x}", f"v_and_b32 v{facc(1, rb)+r}, s{sMask}, v{x}",
                      f"v_lshlrev_b32 v{facc(2, rb)+r}, 16, v{x+1}", f"v_and_b32 v{facc(3, rb)+r}, s{sMask}, v{x+1}"]
        mf = []; gaps = [[] for _ in range(64)]
        pl = [f"buffer_load_dwordx2 v[88:89], v27, {S(sWS)}, s{t2} offen sc1"] + [f"buffer_load_dwordx4 {R4('v', 192+4*n)}, v0, {S(sWS)}, s{sXo} offen offset:{n*1024} sc1" for n in range(4)]
        for n in range(16):
            s, rb = n >> 1, n & 1; g = 4 * n
            for eb in range(4): mf.append(f"{MF} {R4('v', facc(eb, rb))}, {R4('v', 64+4*(n%4))}, {R4('a', (s*4+eb)*4)}, {R4('v', facc(eb, rb))}")
            if n + 3 < 16: gaps[g].append(zread(n + 3))
            if n + 1 < 16: gaps[g + 3].append(f"@need {R4('v', 64+4*((n+1)%4))} a[{((n+1)>>1)*16}:{((n+1)>>1)*16+15}]")
            if n > self.pcheck and pl: gaps[g + 2].append(pl.pop(0))
            elif n < self.pcheck:
                ld, post = wv.pop(0); gaps[g + 2] += ld; gaps[g + 3] += post
            if n == self.pcheck:
                gaps[g + 1] += ["@need v7", f"v_cmp_ne_u32 vcc, s{sTag}, v7"]; gaps[g + 3] += ["s_cbranch_vccnz L_spin_xc", "L_back_xc:"]
                self.stubs.append(self.spin("xc", 6, 7))
        assert not pl
        ph2 = []; pend = []
        for k, (j, qb, kp) in enumerate(units):
            o = 128 + 64 * qb + 16 * j + 8 * kp; t = 96 + 8 * (k % 4)
            ph2 += [f"v_accvgpr_read_b32 v{t+r}, a{o+r}" for r in range(4)] + pend + [f"v_accvgpr_read_b32 v{t+r}, a{o+r}" for r in range(4, 8)]
            ph2 += [f"v_cvt_pk_bf16_f32 v{t+r}, v{t+2*r}, v{t+2*r+1}" for r in range(4)]
            pend = [f"ds_write_b128 v{vR[0]}, {R4('v', t)} offset:{roff(j, qb, kp)}"]
        ph2 += pend
        left = spread(gaps, ph2, list(range(0, 64)), force=True)
        print("   ph2 left", len(left), "wv left", len(wv))
        L += weave(mf, gaps) + self.stamp("wd")
        for x in left:
            L.append(x)
            if x.startswith("ds_write"): ld, post = wv.pop(0); L += ld + post
        L += ["@lg0", "s_barrier"] + self.stamp("B2")
        rd, mf = redmf("a", "a", [32 + 4 * k for k in range(12)])
        L += rd + ["v_cmp_ne_u32 vcc, v9, v89", "s_cbranch_vccnz L_slowB", "L_back_slowB:", "v_add_f32 v8, v8, v88", "@need v[192:207]"]
        pm = []
        for qb in range(2):
            for kp in range(2):
                o = 128 + 64 * qb + 8 * kp; t = 192 + 4 * (qb * 2 + kp)
                pm += [f"{MF} {R4('a', o)}, {Alo}, {R4('v', t)}, {R4('a', o)}", f"{MF} {R4('a', o+4)}, {Ahi}, {R4('v', t)}, {R4('a', o+4)}"]
        mf = pm + [mf[8 * jj + 2 * u + h] for u in range(4) for jj in range(3) for h in range(2)]
        gaps = [[] for _ in range(32)]
        gaps[0] += [f"v_mul_f32 v8, {f2u(ALPHA):#x}, v8"]; gaps[1] += ["v_rcp_f32 v8, v8"]; gaps[3] += ["v_mov_b32 v9, v8"]; gaps[5] += ["v_permlane16_swap_b32 v8, v9"]
        for n in range(5):
            ld, post = wv.pop(0); gaps[4 * n + 2] += ld; gaps[4 * n + 3] += post
        early = [f"v_accvgpr_read_b32 v{96+r}, a{128+r}" for r in range(16)]
        gaps[17].append("s_nop 1"); gaps[19].append("s_nop 1")
        spread(gaps, early[:8], list(range(20, 24))); spread(gaps, early[8:], list(range(26, 30)))
        L += weave(mf, gaps) + self.stamp("acc")
        for qb in range(2):
            for kp in range(2):
                o = 128 + 64 * qb + 8 * kp; t = 96 + 8 * (qb * 2 + kp)
                if qb: L += [f"v_accvgpr_read_b32 v{t+r}, a{o+r}" for r in range(8)]
                L += [f"v_pk_mul_f32 {R2('v', t+2*r)}, {R2('v', t+2*r)}, v[8:9] op_sel:[0,{qb}] op_sel_hi:[1,{qb}]" for r in range(4)]
                L += [f"v_cvt_pk_bf16_f32 v{t+r}, v{t+2*r}, v{t+2*r+1}" for r in range(4)]
                L.append(f"ds_write_b128 v{vR[0]}, {R4('v', t)} offset:{OB + (qb*2+kp)*1024}")
                ld, post = wv.pop(0); L += ld + post
        L += ["@lg0", "s_barrier"] + self.stamp("B3")
        fl = [(s, rb) for s in range(4) for rb in range(2)] + [(s, 0) for s in range(4, 8)] + [(s, 1) for s in range(4, 8)]
        oread = lambda n: f"ds_read_b128 {R4('v', 64+4*(n%8))}, v{vR[fl[n][0]>>1]} offset:{OB + (fl[n][1]*2 + (fl[n][0]&1))*1024}"
        L += [oread(n) for n in range(4)]
        print("   wv left at B3", len(wv))
        for _ in range(2):
            if wv: ld, post = wv.pop(0); L += ld + post
        mf = []; gaps = [[] for _ in range(64)]
        for n, (s, rb) in enumerate(fl):
            g = 4 * n
            for eb in range(4): mf.append(f"{MF} {R4('v', facc(eb, rb))}, {R4('v', 64+4*(n%8))}, {R4(*wvreg(s*4+eb))}, {R4('v', facc(eb, rb))}")
            if n + 4 < 16: gaps[g].append(oread(n + 4))
            if n + 1 < 16: gaps[g + 3].append(f"@need {R4('v', 64+4*((n+1)%8))} " + " ".join(R4(*wvreg(fl[n+1][0]*4+e)) for e in range(4)))
            if wv: ld, post = wv.pop(0); gaps[g + 2] += ld; gaps[g + 3] += post
        def outrow(rb, r):
            t = 96 + 2 * (rb * 4 + r)
            return [f"v_cvt_pk_bf16_f32 v{t}, v{facc(0, rb)+r}, v{facc(1, rb)+r}", f"v_cvt_pk_bf16_f32 v{t+1}, v{facc(2, rb)+r}, v{facc(3, rb)+r}"], \
                   [f"buffer_store_dwordx2 {R2('v', t)}, v{13+rb}, {S(sOut)}, 0 offen offset:{r*512}{self.outflag}"]
        for g in (48, 49, 50): gaps[g].append("s_nop 1")
        for r in range(4):
            cv, st = outrow(0, r); gaps[52 + 3 * r] += cv; gaps[53 + 3 * r] += st
        L += weave(mf, gaps) + ["s_nop 7"] + self.stamp("fin")
        for r in range(4):
            cv, st = outrow(1, r); L += cv + st
        def bcast(src, d):
            return [f"v_mov_b32 v{d}, v{src}", f"v_mov_b32 v{d+2}, v{src}", "s_nop 1", f"v_permlane32_swap_b32 v{d}, v{d+2}", "s_nop 1",
                    f"v_mov_b32 v{d+1}, v{d}", f"v_mov_b32 v{d+3}, v{d+2}", "s_nop 1", f"v_permlane16_swap_b32 v{d}, v{d+1}", f"v_permlane16_swap_b32 v{d+2}, v{d+3}", "s_nop 1"]
        A = ["L_slowA:", "s_nop 7", "s_nop 7",
             "v_min3_f32 v26, v9, v11, v13", "v_min_f32 v26, v26, v15", "v_sub_f32 v27, v26, v9", "v_sub_f32 v11, v26, v11", "v_sub_f32 v13, v26, v13", "v_sub_f32 v15, v26, v15",
             "v_exp_f32 v27, v27", "v_exp_f32 v11, v11", "v_exp_f32 v13, v13", "v_exp_f32 v15, v15", "v_mov_b32 v9, v26",
             "v_mul_f32 v8, v8, v27", "v_mul_f32 v10, v10, v11", "v_mul_f32 v12, v12, v13", "v_mul_f32 v14, v14, v15"] + bcast(27, 2)
        for q in range(4): A += self.scaleO(q, 2 + q)
        A += ["s_nop 1", "s_branch L_back_slowA"]
        B = ["L_slowB:", "s_waitcnt vmcnt(0) lgkmcnt(0)", "v_min_f32 v10, v9, v89", "v_sub_f32 v9, v10, v9", "v_sub_f32 v89, v10, v89", "v_exp_f32 v9, v9", "v_exp_f32 v89, v89", "s_nop 0",
             "v_mul_f32 v8, v8, v9", "v_mul_f32 v88, v88, v89", "v_mov_b32 v10, v9", "v_mov_b32 v11, v89", "s_nop 1",
             "v_permlane16_swap_b32 v9, v10", "v_permlane16_swap_b32 v89, v11", "s_nop 1"]
        resc = lambda x, f: [f"v_lshlrev_b32 v2, 16, v{x}", f"v_and_b32 v3, s{sMask}, v{x}", f"v_mul_f32 v2, v{f}, v2", f"v_mul_f32 v3, v{f}, v3", f"v_cvt_pk_bf16_f32 v{x}, v2, v3"]
        for qb in range(2):
            f1, f2 = (9, 10)[qb], (89, 11)[qb]
            for r in range(16):
                o = 128 + 64 * qb + r
                B += [f"v_accvgpr_read_b32 v2, a{o}", f"v_mul_f32 v2, v{f1}, v2", f"v_accvgpr_write_b32 a{o}, v2"]
            for r in range(8): B += resc(192 + 8 * qb + r, f2)
            for jj in range(3):
                for r in range(8):
                    o = 32 + 16 * jj + 8 * qb + r
                    B += [f"v_accvgpr_read_b32 v4, a{o}"] + resc(4, f1) + [f"v_accvgpr_write_b32 a{o}, v4"]
        B += ["s_nop 1", "s_branch L_back_slowB"]
        self.stubs += [A, B]
        return L

    def fold(self):
        L = ["L_fold:"]
        fst = lambda k: [f"s_memrealtime s[{88+2*k}:{89+2*k}]"] if self.stamps else []
        sF = sB; sA, sBm, sU = sX, sWq, sWk
        L += [f"s_sub_u32 s{sF}, s2, 252"]
        L += srd(sBm, f"s{pWm}", f"s{pWm+1}", 262144) + srd(sU, f"s{pWup}", f"s{pWup+1}", 262144)
        L += srd(sA, f"s{pDw}", f"s{pDw+1}", 7680)
        L += ["v_bfe_u32 v12, v0, 4, 3", "v_lshrrev_b32 v16, 7, v0", "v_lshl_add_u32 v12, v12, 1, v16", "v_lshlrev_b32 v12, 9, v12", "v_lshl_add_u32 v12, v8, 3, v12",
              f"s_lshl_b32 s{t0}, s{sF}, 7", f"v_add_u32 v12, s{t0}, v12", "v_subrev_u32 v16, 512, v12",
              f"buffer_load_dwordx2 v[2:3], v16, {S(sA)}, 0 offen", f"buffer_load_dwordx2 v[4:5], v12, {S(sA)}, 0 offen"]
        L += [f"s_lshl_b32 s{t2}, s{sWave}, 15", f"v_add_u32 v24, s{t2}, v13",
              "v_bfe_u32 v16, v8, 2, 1", "v_bfe_u32 v17, v8, 3, 1", "v_lshl_add_u32 v16, v16, 1, v17", "v_and_b32 v17, 3, v8",
              "v_lshl_add_u32 v18, v16, 2, v17", "v_xor_b32 v18, v18, v10", "v_lshlrev_b32 v18, 4, v18",
              "v_lshl_add_u32 v16, v16, 3, v17", "v_lshl_add_u32 v18, v16, 9, v18", f"v_add_u32 v32, s{sLds}, v18",
              "v_xor_b32 v18, v8, v10", "v_lshlrev_b32 v18, 4, v18", "v_lshl_add_u32 v18, v8, 9, v18", f"v_add_u32 v36, s{sLds}, v18"]
        L += [f"v_xor_b32 v{b+k}, {k*64}, v{b}" for b in (32, 36) for k in range(1, 4)]
        L += [f"v_xor_b32 v{40+k}, {k*32}, v24" for k in range(8)]
        mats = ((pWao, "v", 128, False), (pWdn, "a", 0, False), (pWv, "a", 128, True))
        def issue(grp):
            o = []
            ptr, c, base, natural = mats[grp // 2]
            if grp % 2 == 0: o += srd(sA, f"s{ptr}", f"s{ptr+1}", 131072)
            for k in range(16):
                if k % 4 == 0: o += [f"s_add_u32 m0, s{sLds}, {(grp & 1)*16384 + k*1024}", f"s_mov_b32 s{t0}, {(grp & 1)*16384 + k*1024}"]
                sw = (k & 7) if natural else ((k & 1) | ((k >> 2) << 1))
                o.append(f"buffer_load_dwordx4 v{40+sw}, {S(sA)}, s{t0} offen offset:{(k&3)*1024} lds ;#fa{grp}")
            return o
        L += issue(0) + issue(1)
        L += [f"s_mov_b32 s{t0}, 0x05040100", f"s_mov_b32 s{t1}, 0x07060302",
              f"v_perm_b32 v20, v4, v2, s{t0}", f"v_perm_b32 v21, v4, v2, s{t1}", f"v_perm_b32 v22, v5, v3, s{t0}", f"v_perm_b32 v23, v5, v3, s{t1}"]
        for grp in range(6):
            ptr, c, base, natural = mats[grp // 2]
            L.append(f"@vm fa{grp}")
            for ks in range(8):
                for hb in range(2):
                    L.append(f"ds_read_b128 {R4(c, base + (ks*4 + (grp&1)*2 + hb)*4)}, v{(36 if natural else 32) + (ks&3)} offset:{(grp&1)*16384 + hb*(8192 if natural else 2048) + (ks>>2)*256}")
            L.append("@lg0")
            if grp + 2 < 6: L += issue(grp + 2)
        L += fst(0) + ["s_barrier"]
        L += [f"v_lshrrev_b32 v12, 3, v{vLane}", f"v_and_b32 v13, 7, v{vLane}", "v_lshlrev_b32 v13, 4, v13",
              f"s_lshl_b32 s{t0}, s{sWave}, 6", f"v_add_u32 v12, s{t0}, v12", f"s_lshl_b32 s{t0}, s{sF}, 7", f"v_add_u32 v13, s{t0}, v13",
              "v_lshl_add_u32 v14, v12, 9, v13", "v_lshl_add_u32 v15, v12, 10, v13", f"s_lshl_b32 s{t1}, s{sWave}, 13"]
        for im in (0, 1, 3):
            for p in range(8):
                so = (im * 131072 + p * 4096) if im < 2 else p * 8192
                L += [f"s_add_u32 m0, s{t1}, {im*32768 + p*1024}", f"s_mov_b32 s{t0}, {so}",
                      f"buffer_load_dwordx4 v{14 if im < 2 else 15}, {S(sBm if im < 2 else sU)}, s{t0} offen lds ;#im"]
        L += ["v_lshlrev_b32 v12, 4, v0",
              f"s_mul_i32 s{t0}, s{sF}, 4096", f"s_add_u32 s{t0}, s{t0}, {DW_F}",
              f"buffer_store_dwordx4 v[20:23], v12, {S(sWS)}, s{t0} offen sc1"]
        L += ["v_lshrrev_b32 v16, 2, v8", "v_lshl_add_u32 v16, v10, 3, v16", "v_lshlrev_b32 v16, 7, v16", "v_and_b32 v18, 3, v8",
              "v_lshl_add_u32 v26, v18, 3, v16", "v_add_u32 v27, 65536, v26",
              "v_lshlrev_b32 v31, 10, v18", "v_lshl_add_u32 v31, v9, 8, v31", "v_lshrrev_b32 v18, 2, v8", "v_lshl_add_u32 v31, v18, 4, v31",
              f"s_lshl_b32 s{t0}, s{sWave}, 13", f"v_add_u32 v27, s{t0}, v27", f"v_add_u32 v31, s{t0}, v31", "v_add_u32 v31, 65536, v31",
              f"v_lshlrev_b32 v28, 4, v{vLane}", "v_add_u32 v29, 131072, v28", f"v_add_u32 v30, s{t0}, v29",
              f"s_xor_b32 s{t1}, s{sWave}, s{sF}", f"s_lshl_b32 s{t1}, s{t1}, 13", f"s_lshl_b32 s{t2}, s{sF}, 15", f"s_add_u32 s{sXo}, s{t1}, s{t2}"]
        L += self.tagcalc()
        L += ["@vm im", "s_barrier"] + fst(1)
        def gemm(c, abase, bread):
            o = [x for eb in range(4) for x in bread(0, eb, 32 + 4 * eb)]
            for ks in range(8):
                o.append(f"@need v[{32+16*(ks&1)}:{47+16*(ks&1)}]")
                if ks < 7: o += [x for eb in range(4) for x in bread(ks + 1, eb, 32 + 16 * (1 - (ks & 1)) + 4 * eb)]
                for db in range(4):
                    for eb in range(4):
                        d = 64 + (db * 4 + eb) * 4
                        o.append(f"{MF} {R4('v', d)}, {R4(c, abase+(ks*4+db)*4)}, {R4('v', 32+16*(ks&1)+4*eb)}, {R4('v', d) if ks else '0'}")
            o += ["s_nop 7"]
            return o
        def trP(im):
            return lambda ks, eb, t: [f"ds_read_b64_tr_b16 {R2('v', t+2*j)}, v26 offset:{im*32768 + ks*4096 + j*512 + eb*32}" for j in range(2)]
        def pack(p, eb, t):
            o = []
            for hb in range(2):
                d = 64 + ((2 * p + hb) * 4 + eb) * 4
                o += [f"v_cvt_pk_bf16_f32 v{t+2*hb}, v{d}, v{d+1}", f"v_cvt_pk_bf16_f32 v{t+2*hb+1}, v{d+2}, v{d+3}"]
            return o
        def emit_out(base, ob, src=None):
            o = []
            for p in range(2):
                for eb in range(4):
                    t = 32 + 4 * (p * 4 + eb)
                    o += (src or pack)(p, eb, t)
            o += [f"ds_write_b128 v31, {R4('v', 32+4*(p*4+eb))} offset:{p*4096 + eb*64}" for p in range(2) for eb in range(4)]
            o += ["@lg0", "v_subrev_u32 v12, 65536, v30"]
            o += [f"ds_read_b128 {R4('v', ob+4*k)}, v12 offset:{k*1024}" for k in range(8)]
            for p in range(2):
                o.append(f"s_add_u32 s{t0}, s{sXo}, {base + p*4096}")
                for eb in range(4):
                    o.append(f"buffer_store_dwordx4 {R4('v', ob+4*(p*4+eb))}, v28, {S(sWS)}, s{t0} offen offset:{eb*1024} sc1")
            return o
        L += emit_out(WU_F, 64, lambda p, eb, t: [f"ds_read_b64_tr_b16 {R2('v', t+2*j)}, v27 offset:{32768 + p*4096 + j*512 + eb*32}" for j in range(2)])
        L += fst(2) + gemm("v", 128, trP(0)) + fst(3)
        for p in range(2):
            for eb in range(4):
                t = 32 + 4 * (p * 4 + eb)
                L += pack(p, eb, t) + [f"ds_write_b128 v30, {R4('v', t)} offset:{(p*4+eb)*1024}"]
        L += ["@lg0", "s_barrier"]
        L += gemm("a", 0, trP(1)) + fst(4) + emit_out(WD_F, 128) + fst(5)
        L += gemm("a", 128, lambda ks, eb, t: [f"ds_read_b128 {R4('v', t)}, v29 offset:{(ks*4+eb)*1024}"]) + emit_out(WV_F, 160) + ["s_waitcnt vmcnt(0)"]
        L += [f"s_lshl_b32 s{t0}, s{sF}, 5", f"s_add_u32 s{t0}, s{t0}, s{sWave}", f"s_lshl_b32 s{t1}, s{t0}, 2", f"s_add_u32 s{t1}, s{t1}, {FLAG_FOLD}",
              f"v_mov_b32 v7, s{sTag}", f"v_lshlrev_b32 v6, 26, v{vLane}", f"buffer_store_dword v7, v6, {S(sWS)}, s{t1} offen sc1",
              ] + ([] if not self.stamps else ["s_memrealtime s[86:87]", "s_waitcnt lgkmcnt(0)", "s_sub_u32 s86, s86, s84", "v_mov_b32 v8, s86", f"s_lshl_b32 s{t1}, s{sF}, 2", f"s_add_u32 s{t1}, s{t1}, s{sWave}", f"s_lshl_b32 s{t1}, s{t1}, 2",
              f"s_add_u32 s{t1}, s{t1}, {TS_OFF + (1 << 20)}", "v_mov_b32 v9, 0", f"buffer_store_dword v8, v9, {S(sWS)}, s{t1} offen"] + [x for k in range(6) for x in (f"s_sub_u32 s86, s{88+2*k}, s84", "v_mov_b32 v8, s86", f"buffer_store_dword v8, v9, {S(sWS)}, s{t1} offen offset:{64*(k+1)}")]) + [
              f"s_cmp_lg_u32 s{t0}, 0", "s_cbranch_scc1 L_end"]
        L += [f"v_lshrrev_b32 v12, 2, v{vLane}", "v_min_u32 v13, 13, v12", "v_min_u32 v14, 3, v12", f"v_and_b32 v15, 3, v{vLane}", "v_lshlrev_b32 v15, 2, v15",
              "v_lshl_add_u32 v12, v12, 7, v15", "v_lshl_add_u32 v13, v13, 7, v15", "v_lshl_add_u32 v14, v14, 7, v15", f"s_mov_b32 s{sCnt}, 0", "L_ep:", "s_sleep 8"]
        for n in range(17):
            so = FLAG_FOLD if n == 16 else FLAG_XA + n * 2048
            L += [f"s_mov_b32 s{t0}, {so}", f"buffer_load_dword v{32+n}, v{14 if n == 16 else (13 if n & 7 == 7 else 12)}, {S(sWS)}, s{t0} offen sc1"]
        L += ["s_waitcnt vmcnt(0)"]
        for n in range(17): L.append(f"v_xor_b32 v{32+n}, s{sTag}, v{32+n}")
        for n in range(1, 17, 2): L.append(f"v_or3_b32 v32, v32, v{32+n}, v{33+n}")
        L += ["v_cmp_ne_u32 vcc, 0, v32", f"s_add_u32 s{sCnt}, s{sCnt}, 1", f"s_cmp_gt_u32 s{sCnt}, 0x8000", "s_cbranch_scc1 L_ep2", "s_cbranch_vccnz L_ep", "L_ep2:",
              f"buffer_store_dword v7, v6, {S(sWS)}, 0 offen sc1", "s_endpgm"]
        return L

    def dump_stamps(self):
        if not self.stamps: return []
        if self.amp:
            L = ["s_waitcnt vmcnt(0)"] + self.stamp("end") + ["s_waitcnt lgkmcnt(0)"]
            r = STAMPS[self.stnames.index(self.amp)]; e = STAMPS[self.stnames.index("end")]
            return L + [f"s_sub_u32 s{t0}, s{r}, s84", f"s_add_u32 s{t0}, s{t0}, s{e}", "L_amp:", f"s_memrealtime s[{t2}:{t3}]", "s_waitcnt lgkmcnt(0)",
                        f"s_sub_u32 s{t1}, s{t2}, s{t0}", f"s_cmp_lt_i32 s{t1}, 0", "s_cbranch_scc1 L_amp"]
        L = ["s_waitcnt vmcnt(0)"] + self.stamp("end") + ["s_waitcnt lgkmcnt(0)", f"s_lshl_b32 s{t0}, s2, 2", f"s_add_u32 s{t0}, s{t0}, s{sWave}",
             f"s_lshl_b32 s{t0}, s{t0}, 7", f"s_add_u32 s{t0}, s{t0}, {TS_OFF}", "v_mov_b32 v2, 0"]
        for n in range(self.nst): L += [f"v_mov_b32 v3, s{STAMPS[n]}", f"buffer_store_dword v3, v2, {S(sWS)}, s{t0} offen offset:{4*n}"]
        return L

    def build(self, path):
        st = WState()
        ent = resolve(self.entry(), st)
        fold = resolve(self.fold(), st.copy())
        c = self.front() + self.stamp("loop")
        for j in range(14): c += self.iteration(j, False, f"i{j}")
        c += [f"s_cmp_lg_u32 s{sN15}, 0", "s_cbranch_scc1 L_n15"]
        common = resolve(c, st)
        G, nh = self.G, self.nhead
        sb = st.copy()
        pa = resolve(self.iteration(14, False, "i14") + self.iteration(15, True, "i15"), st)
        self.G, self.nhead = G, nh
        pb = resolve(["L_n15:"] + self.iteration(14, True, "l14") + ["s_branch L_tail"], sb)
        tl = self.tail()
        ta = resolve(tl, st.copy()); tb = resolve(tl, sb.copy())
        assert ta == tb, "tail waits differ between paths"
        tailc = ["L_tail:"] + ta + self.dump_stamps() + ["s_endpgm"]
        rare = [self.rare(0), self.rare(1)]
        a = Asm()
        a(f'.amdgcn_target "amdgcn-amd-amdhsa--gfx950"\n.text\n.globl {KN}\n.p2align 12\n.p2align 8\n.type {KN},@function\n{KN}:')
        a.extend(ent + common + pa + tailc + pb)
        for s_ in self.stubs + rare:
            if self.lite and s_[0].startswith(("L_stub", "L_slow", "L_rare")): a.extend([s_[0], "s_endpgm"])
            else: a.extend(s_)
        a.extend(fold)
        a("L_end:\ns_endpgm")
        a(f""".section .rodata,"a"
.p2align 6
.amdhsa_kernel {KN}
.amdhsa_next_free_vgpr 512
.amdhsa_next_free_sgpr 102
.amdhsa_accum_offset 256
.amdhsa_group_segment_fixed_size 0
.amdhsa_kernarg_size 96
.amdhsa_user_sgpr_count 2
.amdhsa_user_sgpr_kernarg_segment_ptr 1
.amdhsa_system_sgpr_workgroup_id_x 1
.end_amdhsa_kernel""")
        hdr = open("header.txt").read()
        if self.stamps: hdr += "; stamps " + " ".join(self.stnames) + "\n"
        open(path, "w").write(hdr + a.text())
        n = 0
        import asmlib; asmlib._seen.clear()
        n += len(check_trace(ent + common + pa + tailc, "pathA"))
        n += len(check_trace(ent + common + pb + tailc, "pathB"))
        n += len(check_trace(ent + fold, "fold"))
        full = ent + common + pa + tailc
        stub = {s_[0][:-1]: s_ for s_ in self.stubs}
        for name in ("i0", "i1", "i2", "i15"):
            k = full.index(f"s_cbranch_vccnz L_stub_{name}"); e = full.index(f"L_back_{name}:")
            p = int(name[1:]) & 1
            n += len(check_trace(full[:k + 1] + stub[f"L_stub_{name}"] + rare[p] + full[e:e + 400], "rare" + name))
        k = full.index("s_cbranch_vccnz L_slowA")
        n += len(check_trace(full[:k + 1] + stub["L_slowA"] + full[k + 1:], "slowA"))
        k = full.index("s_cbranch_vccnz L_slowB")
        n += len(check_trace(full[:k + 1] + stub["L_slowB"] + full[k + 1:], "slowB"))
        import subprocess
        r = subprocess.run(["clang", "-x", "assembler", "-target", "amdgcn-amd-amdhsa", "-mcpu=gfx950", "-c", path, "-o", "x.o"], capture_output=True, text=True)
        print(path, "problems", n, "lines", len(a.lines), "asm", "ok" if r.returncode == 0 else r.stderr[:600])

ALLST = "b0 b1 gg mseen gelu1 g2 loop loopend B1 pub B2 gelu conv B3 fin".split()
ST1 = "b0 x b1 gg gelu1 g2 loop it1 it2 it3 it13 it14 loopend B1 conv".split()
TL = "it14 loopend B1 pub ug gelu conv Bz wd B2 acc B3 fin".split()
FS = "b0 x ln pubx b1 gg mseen gelu1 g2s2 g2s4 g2 b3 loop it1".split()
FS = "b0 mst x ln pubx b1 gg mseen gelu1 g2s2 g2s4 g2 loop it1".split()
FS = "xiss b0 mst x ln pubx b1 gg mseen gelu1 g2s4 g2 loop it1".split()
if __name__ == "__main__":
    E = "exp/"
    kw = dict(stamps=FS, cyc=True, lite=True)
    Gen(**kw).build(E + "k_stc.s")
    Gen(mcheckg=39, mpoll=2, flagstep=5, xpoll=-1, xpollg=9, xcheck=44, **kw).build(E + "k_stc2.s")
    Gen(mcheckg=39, mpoll=2, flagstep=5, xpoll=-1, xpollg=9, xcheck=44, rstop=84, **kw).build(E + "k_stc3.s")
    Gen(mcheckg=31, mpoll=2, flagstep=4, xpoll=-1, xpollg=7, xcheck=32, rstop=80, mper=(1, 2, 2), **kw).build(E + "k_stc4.s")
    Gen(mcheckg=31, mpoll=2, flagstep=4, xpoll=-1, xpollg=7, xcheck=32, rstop=96, mper=(1, 2, 2), gsteps=(9, 11, 13, 15), **kw).build(E + "k_stc5.s")
    Gen(aluper=7, **kw).build(E + "k_stc6.s")
```
